```python
import torch

def _softmax(x, axis=-1):
    return torch.softmax(x, dim=axis)
def _gelu(x):
    return torch.nn.functional.gelu(x, approximate="tanh")
def _silu(x):
    return torch.nn.functional.silu(x)
def _sigmoid(x):
    return torch.sigmoid(x)
def _layernorm(x, axis=-1, eps=1e-5):
    m = x.mean(dim=axis, keepdim=True)
    v = x.var(dim=axis, keepdim=True, unbiased=False)
    return (x - m) / torch.sqrt(v + eps)
def _scatter_add(tgt, idx, src, axis=0):
    return tgt.clone().index_add_(axis, idx, src)
def _segment_sum(src, seg, n):
    out = torch.zeros((n,) + src.shape[1:], dtype=src.dtype)
    return out.index_add_(0, seg, src)
def _pad(x, pw):
    flat = tuple(v for pair in reversed(pw) for v in pair)
    return torch.nn.functional.pad(x, flat)

kernel_name = 'standalone__weight_only_int_gptq__prompt'

def setup_inputs():

    _w = (lambda a: (lambda t: t.to(torch.bfloat16) if t.is_floating_point() else t)(torch.as_tensor(a)))
    B, S, D, F = 1, 2048, 1024, 3584
    bits = max(2, min(4, 4))
    pf = 32 // bits
    G = 64 if 64 > 0 else D
    G = max(pf, (G // pf) * pf)
    D = max(G, (D // G) * G)
    ng = D // G
    qmax = 1 << bits
    qw = torch.randint(0, qmax, (D, F)).to(torch.int64)
    packed = torch.zeros((D // pf, F), dtype=torch.int64)
    for i in range(pf):
        packed |= (qw[i::pf] << (i * bits))
    packed = packed.to(torch.int32)
    return {
        "x": _w((lambda *s: torch.randn(*s, dtype=torch.bfloat16) * 0.05)(B, S, D)),
        "qw_packed": _w(packed),
        "scales": _w(torch.abs((lambda *s: torch.randn(*s, dtype=torch.bfloat16) * 0.05)(ng, F)).to(float) * 0.1 + 0.01),
        "zeros": _w(torch.randint(0, qmax, (ng, F)).to(float)),
        "bits": _w((lambda _x: torch.as_tensor(_x, dtype=torch.int32))(bits)),
    }

def reference(x, qw_packed, scales, zeros, bits):
    b = int(bits)
    pf = 32 // b
    mask = (1 << b) - 1
    P, F = qw_packed.shape
    D = P * pf
    ng = scales.shape[0]
    G = D // ng
    shifts = (lambda x, dt: x.to(dt))(torch.arange(pf) * b, qw_packed.dtype)
    qw = ((qw_packed[:, None, :] >> shifts[None, :, None]) & mask).reshape(D, F)
    s = (lambda x, n, axis: torch.repeat_interleave(x, n, dim=axis))(scales, G, axis=0)
    z = (lambda x, n, axis: torch.repeat_interleave(x, n, dim=axis))(zeros, G, axis=0)
    w = ((lambda x, dt: x.to(dt))(qw, x.dtype) - z) * s
    return torch.einsum("bsd,df->bsf", x, w)
```

```python
import sys, argparse

NAME = "standalone__weight_only_int_gptq__prompt"
HEADER = open("cdna_kernels/%s.s.ref" % NAME).read().split("; Override launch")[0]

XS = 2048
QS = 14336
SS = 7168
WBASE = 131072
LDS_BYTES = 163840


class Opt:
    tail = True
    st_flags = "sc0 sc1"
    LA = 12
    G = 8
    WL = 4
    prio_c = 3
    prio_p = 0
    stamps = False
    align8 = False
    rotmask = 3


class Asm:
    def __init__(self):
        self.lines = []
    def __call__(self, s):
        self.lines.append("    " + s)
    def label(self, s):
        self.lines.append(s + ":")
    def c(self, s):
        self.lines.append("    ; " + s)
    def text(self):
        return "\n".join(self.lines) + "\n"


def vr(b, n=4):
    return f"v[{b}:{b+n-1}]"


SRD_X, SRD_Q, SRD_S, SRD_Z, SRD_O = 4, 8, 12, 16, 20
S_WAVE = 24
S_W4 = 25
S_TM, S_U, S_E, S_ROT = 26, 27, 28, 29
S_XQ = 30
S_WQ = 34
S_SQ = 38
S_M0B = 42
S_T0, S_T1, S_T2, S_T3 = 43, 44, 45, 46
S_MASK0, S_MASK1 = 47, 48
S_CB = 49
S_ROW = 56
S_STAMP = 72


def common_prologue(a, o):
    a("s_cmp_ge_u32 s2, 256")
    a("s_cbranch_scc1 L_end")
    a("s_load_dwordx2 s[4:5], s[0:1], 0")
    a("s_load_dwordx2 s[8:9], s[0:1], 8")
    a("s_load_dwordx2 s[12:13], s[0:1], 16")
    a("s_load_dwordx2 s[16:17], s[0:1], 24")
    a("s_load_dwordx2 s[20:21], s[0:1], 40")
    if o.stamps:
        a("s_load_dwordx2 s[100:101], s[0:1], 56")
        a(f"s_memtime s[{S_STAMP}:{S_STAMP+1}]")
    a("v_lshrrev_b32 v1, 6, v0")
    a("v_and_b32 v0, 63, v0")
    a("s_mov_b32 s6, 0x400000")
    a("s_mov_b32 s7, 0x00020000")
    a(f"v_readfirstlane_b32 s{S_WAVE}, v1")
    a(f"s_mov_b32 s10, {128*QS}")
    a("s_mov_b32 s11, 0x00020000")
    a(f"s_mov_b32 s14, {16*SS}")
    a("s_mov_b32 s15, 0x00020000")
    a(f"s_mov_b32 s18, {16*SS}")
    a("s_mov_b32 s19, 0x00020000")
    a(f"s_mov_b32 s22, {2048*SS}")
    a("s_mov_b32 s23, 0x00020000")
    a(f"s_and_b32 s{S_W4}, s{S_WAVE}, 3")
    a(f"s_and_b32 s{S_TM}, s2, 7")
    a(f"s_lshr_b32 s{S_U}, s2, 4")
    a(f"s_bfe_u32 s{S_E}, s2, 0x10003")
    a(f"s_and_b32 s{S_ROT}, s{S_U}, {o.rotmask}")
    a("v_lshrrev_b32 v2, 3, v0")
    a("v_lshrrev_b32 v3, 4, v0")
    a("v_and_b32 v4, 7, v0")
    a("v_xor_b32 v4, v4, v3")
    a("v_lshlrev_b32 v4, 4, v4")
    a("v_lshl_add_u32 v4, v2, 11, v4")
    a("v_xor_b32 v5, 64, v4")
    a(f"s_lshl_b32 s{S_T0}, s{S_TM}, 19")
    a(f"s_lshl_b32 s{S_T1}, s{S_W4}, 17")
    a(f"s_add_u32 s{S_T0}, s{S_T0}, s{S_T1}")
    for q in range(4):
        a(f"s_add_u32 s{S_T1}, s{S_ROT}, {q}")
        a(f"s_and_b32 s{S_T1}, s{S_T1}, 3")
        a(f"s_lshl_b32 s{S_T2}, s{S_T1}, 9")
        a(f"s_add_u32 s{S_XQ+q}, s{S_T0}, s{S_T2}")
        a(f"s_mul_i32 s{S_WQ+q}, s{S_T1}, {32*QS}")
        a(f"s_mul_i32 s{S_SQ+q}, s{S_T1}, {4*SS}")
    a(f"s_lshl_b32 s{S_T3}, s{S_E}, 16")
    for g in range(8):
        src = "v4" if g % 2 == 0 else "v5"
        a(f"s_xor_b32 s{S_T1}, s{S_T3}, {g*16384}")
        a(f"s_sub_u32 s{S_T1}, s{S_T1}, {1024*(g%4)}")
        a(f"v_add_u32 v{240+g}, s{S_T1}, {src}")
    a(f"s_lshl_b32 s{S_M0B}, s{S_W4}, 13")
    a(f"s_mul_i32 s{S_T0}, s{S_U}, 224")
    a(f"s_lshl_b32 s{S_T1}, s{S_E}, 7")
    a(f"s_add_u32 s{S_CB}, s{S_T0}, s{S_T1}")
    a(f"s_add_u32 s{S_CB+1}, s{S_CB}, 32")
    a(f"s_add_u32 s{S_CB+2}, s{S_CB}, 64")
    a(f"s_add_u32 s{S_CB+3}, s{S_T0}, 96")
    a(f"s_cmp_ge_u32 s{S_WAVE}, 4")
    a("s_cbranch_scc1 L_producer")


def dma_ops(j):
    ops = []
    b = j % 4
    for g in range(8):
        pre = None
        if g % 4 == 0:
            pre = f"s_add_u32 m0, s{S_M0B}, {b*32768 + (g//4)*4096 - b*128}"
        ins = f"buffer_load_dwordx4 v{240+g}, s[{SRD_X}:{SRD_X+3}], s{S_XQ + j//4} offen offset:{1024*(g%4) + b*128} lds"
        ops.append((pre, ins))
    return ops


def schedule(o):
    if o.tail:
        r = {0: 0, 1: 0, 2: 1, 3: 2, 4: 3, 5: 4, 6: 4, 7: 5, 8: 6, 9: 7, 10: 8, 11: 9, 12: 10, 13: 11, 14: 11, 15: 12}
    else:
        r = {j: max(j - 1, 0) for j in range(16)}
    d = {j: r[j-4] + 1 for j in range(4, 16)}
    return r, d


def acc_reg(cb, rb):
    if cb < 6:
        return (cb * 4 + rb) * 4
    return 96 + ((cb - 6) * 2 + rb) * 4


def stamp(a, o, idx):
    if o.stamps:
        a(f"s_memtime s[{S_STAMP+2*idx}:{S_STAMP+2*idx+1}]")


def consumer(a, o):
    r, d = schedule(o)
    V_XA = 248
    V_WA = 252
    V_O0, V_O1 = 253, 254
    if o.prio_c:
        a(f"s_setprio {o.prio_c}")
    a("s_waitcnt lgkmcnt(0)")
    for j in range(4):
        for pre, ins in dma_ops(j):
            if pre:
                a(pre)
                a("s_nop 0")
            a(ins)
    a("v_and_b32 v2, 15, v0")
    a("v_lshrrev_b32 v3, 4, v0")
    a("v_lshrrev_b32 v4, 1, v2")
    a("v_xor_b32 v4, v4, v3")
    a("v_lshlrev_b32 v4, 4, v4")
    a("v_lshl_add_u32 v4, v2, 7, v4")
    a(f"v_add_u32 v{V_XA}, s{S_M0B}, v4")
    a(f"v_add_u32 v{V_XA+1}, 0x10000, v{V_XA}")
    a(f"v_xor_b32 v{V_XA+2}, 64, v{V_XA}")
    a(f"v_add_u32 v{V_XA+3}, 0x10000, v{V_XA+2}")
    a(f"v_lshlrev_b32 v{V_WA}, 4, v0")
    a(f"v_add_u32 v{V_WA}, {WBASE}, v{V_WA}")
    a(f"v_mul_u32_u24 v5, {4*SS}, v3")
    a("v_lshl_add_u32 v5, v2, 2, v5")
    a(f"s_lshl_b32 s{S_T0}, s{S_CB}, 1")
    a(f"s_lshl_b32 s{S_T1}, s{S_CB+3}, 1")
    a(f"v_add_u32 v{V_O0}, s{S_T0}, v5")
    a(f"v_add_u32 v{V_O1}, s{S_T1}, v5")
    a(f"s_lshl_b32 s{S_T0}, s{S_TM}, 8")
    a(f"s_lshl_b32 s{S_T1}, s{S_W4}, 6")
    a(f"s_add_u32 s{S_T0}, s{S_T0}, s{S_T1}")
    a(f"s_lshl_b32 s{S_T2}, s{S_E}, 5")
    for rb in range(4):
        a(f"s_xor_b32 s{S_T1}, s{S_T2}, {rb*16}")
        a(f"s_add_u32 s{S_T1}, s{S_T1}, s{S_T0}")
        a(f"s_mul_i32 s{S_ROW+4*rb}, s{S_T1}, {SS}")
        for q in range(1, 4):
            a(f"s_add_u32 s{S_ROW+4*rb+q}, s{S_ROW+4*rb}, {q*SS}")

    M = []
    start = []
    sector_of = {}
    for i in range(16):
        start.append(len(M))
        if o.tail and i >= 12:
            sg = [3, 0, 1, 2][i - 12]
            sector_of[i] = sg
            rbs = range(2) if sg == 3 else range(4)
            for st in range(4):
                for ks in range(2):
                    for b in range(2):
                        for rb in rbs:
                            M.append((acc_reg(2*sg + b, rb), ('x', 12 + st, ks, rb), ('w', i, st*4 + ks*2 + b), i))
        else:
            for ks in range(2):
                for cb in range(8):
                    for rb in (range(4) if cb < 6 else range(2)):
                        M.append((acc_reg(cb, rb), ('x', i, ks, rb), ('w', i, ks*8 + cb), i))
    N = len(M)
    start.append(N)
    first_use, last_use = {}, {}
    for n, (ac, xk, wk, i) in enumerate(M):
        for k in (xk, wk):
            first_use.setdefault(k, n)
            last_use[k] = n
    posB = [0] + [start[i] - o.LA for i in range(1, 16)] + [N + o.G + 1000]
    reads_at = {n: [] for n in range(N + 1)}
    def xinterval(k):
        _, j, ks, rb = k
        if o.tail:
            if j == 14 and rb >= 2:
                return 13
            if j == 15 and rb >= 2:
                return 13
        return r[j]
    for i in range(16):
        P0 = posB[i]
        P1 = min(posB[i+1] - o.G, N - 1)
        wk = [('w', i, f) for f in range(16)]
        pos = {}
        nxt = P1 + 1
        for k in reversed(wk):
            p = min(first_use[k] - o.LA, nxt - 1)
            p = max(p, P0)
            pos[k] = p
            nxt = p if p > P0 else P0 + 1
        xs = sorted([k for k in first_use if k[0] == 'x' and xinterval(k) == i], key=lambda k: first_use[k])
        used = {}
        for k, p in pos.items():
            used[p] = used.get(p, 0) + 1
        free = [p for p in range(P0, P1 + 1) if p not in used]
        urgent = [k for k in xs if first_use[k] - o.LA <= P1]
        lazy = [k for k in xs if k not in urgent]
        for k in urgent:
            dl = max(first_use[k] - o.LA, P0)
            cand = [p for p in free if p <= dl]
            if cand:
                p = cand[-1]
                free.remove(p)
            else:
                p = dl
            pos[k] = p
        if lazy:
            fr = free
            if i == 0:
                fr = [p for p in free if p >= 24]
            step = len(fr) / len(lazy)
            for t, k in enumerate(lazy):
                pos[k] = fr[min(int((t + 0.5) * step), len(fr) - 1)]
        for k in sorted(pos, key=lambda k: (pos[k], first_use[k])):
            reads_at[pos[k]].append(k)

    epi_at = {n: [] for n in range(N + 1)}
    final_epi = []
    def epi_ops(sg):
        ops = []
        rbs = range(2) if sg == 3 else range(4)
        for rb in rbs:
            for q in range(4):
                a0 = acc_reg(2*sg, rb) + q
                a1 = acc_reg(2*sg + 1, rb) + q
                ops.append(f"v_cvt_pk_bf16_f32 v{a0}, v{a0}, v{a1}")
                va = V_O1 if sg == 3 else V_O0
                off = 0 if sg == 3 else 64*sg
                ops.append(f"buffer_store_dword v{a0}, v{va}, s[{SRD_O}:{SRD_O+3}], s{S_ROW+4*rb+q} offen offset:{off} {o.st_flags}".rstrip())
        return ops
    free_acc_at = {}
    if o.tail:
        for i in range(12, 15):
            ops = epi_ops(sector_of[i])
            p = start[i+1] + 3
            seq = []
            cv = ops[0::2]; stv = ops[1::2]
            for t in range(len(cv) + 1):
                if t < len(cv): seq.append(cv[t])
                if t >= 1: seq.append(stv[t-1])
            for op in seq:
                epi_at[p].append(op)
                p += 1
            sg = sector_of[i]
            rbs = range(2) if sg == 3 else range(4)
            free_acc_at[p + 1] = [acc_reg(2*sg + b, rb) for b in range(2) for rb in rbs]
        final_epi = epi_ops(2)
    else:
        for sg in (0, 1, 2, 3):
            final_epi += epi_ops(sg)

    pool = [112 + 4*t for t in range(32)]
    reg = {}
    issued = []
    idx = {}
    done_upto = 0
    acc_started = set()
    xwait_done = set()
    maxlive = 0
    def wait_lgkm(cnt):
        a(f"s_waitcnt lgkmcnt({cnt})")
    bar_at = {posB[i]: i for i in range(16)}
    for n in range(N + 1):
        if n in free_acc_at:
            pool.extend(free_acc_at[n])
        if n in bar_at:
            i = bar_at[n]
            if done_upto < len(issued):
                wait_lgkm(0)
                done_upto = len(issued)
            a("s_barrier")
            if i in (0, 1, 4, 8, 12, 15):
                stamp(a, o, {0: 1, 1: 2, 4: 3, 8: 4, 12: 5, 15: 6}[i])
        for k in reads_at[n]:
            if len(issued) - done_upto >= 15:
                wait_lgkm(13)
                done_upto = len(issued) - 13
            assert pool, f"out of frag regs at {n} {k}"
            rg = pool.pop(0)
            reg[k] = rg
            maxlive = max(maxlive, len(reg))
            if k[0] == 'x':
                _, j, ks, rb = k
                if j < 4 and j not in xwait_done:
                    a(f"s_waitcnt vmcnt({8*(3-j)})")
                    xwait_done.add(j)
                b = j % 4
                a(f"ds_read_b128 {vr(rg)}, v{V_XA + 2*ks + b//2} offset:{(b%2)*32768 + rb*2048}")
            else:
                _, i, f = k
                a(f"ds_read_b128 {vr(rg)}, v{V_WA} offset:{(i%2)*16384 + f*1024}")
            idx[k] = len(issued)
            issued.append(k)
        for op in epi_at[n]:
            a(op)
        if n == N:
            break
        ac, xk, wk, i = M[n]
        need = max(idx[xk], idx[wk])
        if need >= done_upto:
            wait_lgkm(len(issued) - 1 - need)
            done_upto = need + 1
        cin = vr(ac) if ac in acc_started else "0"
        acc_started.add(ac)
        a(f"v_mfma_f32_16x16x32_bf16 {vr(ac)}, {vr(reg[xk])}, {vr(reg[wk])}, {cin}")
        for k in (xk, wk):
            if last_use[k] == n:
                pool.append(reg.pop(k))
    stamp(a, o, 7)
    a("s_nop 7")
    a("s_nop 3")
    cv = final_epi[0::2]; stv = final_epi[1::2]
    for t in range(len(cv) + 2):
        if t < len(cv): a(cv[t])
        if t >= 2: a(stv[t-2])
    if o.stamps:
        stamp(a, o, 8)
        a("s_waitcnt vmcnt(0)")
        stamp(a, o, 9)
        write_stamps(a, 10)
    a("s_endpgm")
    return maxlive


def write_stamps(a, n):
    a("s_waitcnt lgkmcnt(0)")
    a("s_mov_b32 s4, s100")
    a("s_mov_b32 s5, s101")
    a("s_mov_b32 s6, 0x1000000")
    a("s_mov_b32 s7, 0x00020000")
    a("s_lshl_b32 s43, s2, 3")
    a(f"s_add_u32 s43, s43, s{S_WAVE}")
    a("s_lshl_b32 s43, s43, 7")
    a("v_mov_b32 v1, 0")
    for t in range(n):
        a(f"v_mov_b32 v2, s{S_STAMP+2*t}")
        a(f"v_mov_b32 v3, s{S_STAMP+2*t+1}")
        a(f"buffer_store_dwordx2 v[2:3], v1, s[4:7], s43 offen offset:{8*t}")
        a("s_nop 1")
    a("s_waitcnt vmcnt(0)")


def producer(a, o):
    r, d = schedule(o)
    a.label("L_producer")
    if o.prio_p:
        a(f"s_setprio {o.prio_p}")
    V_RAW = 16
    V_S = 80
    V_Z = 96
    V_QN = 112
    V_QT = 116
    V_SN, V_ST = 120, 121
    V_LW = 122
    V_C0, V_C1, V_C2 = 123, 124, 125
    V_A = 128
    V_F = 140
    V_P = 160
    a("v_and_b32 v2, 15, v0")
    a("v_lshrrev_b32 v3, 4, v0")
    a("v_and_b32 v4, 1, v3")
    a("v_lshl_add_u32 v4, v2, 1, v4")
    a("v_lshrrev_b32 v5, 5, v0")
    a(f"s_and_b32 s{S_T0}, s{S_W4}, 1")
    a(f"s_cmp_eq_u32 s{S_T0}, 0")
    a(f"s_cselect_b32 s{S_T1}, s{S_CB}, s{S_CB+2}")
    a(f"s_cselect_b32 s{S_T2}, s{S_CB+1}, s{S_CB+3}")
    a(f"v_mov_b32 v6, s{S_T1}")
    a(f"v_mov_b32 v7, s{S_T2}")
    a("v_cmp_eq_u32 vcc, 0, v5")
    a("v_cndmask_b32 v6, v7, v6, vcc")
    a("v_add_u32 v6, v6, v4")
    a(f"v_lshlrev_b32 v{V_SN}, 1, v6")
    a(f"s_lshr_b32 s{S_T0}, s{S_W4}, 1")
    a(f"s_mul_i32 s{S_T0}, s{S_T0}, {4*QS}")
    a(f"v_lshlrev_b32 v6, 2, v6")
    a(f"v_add_u32 v{V_QN}, s{S_T0}, v6")
    for jj in range(1, 4):
        a(f"v_add_u32 v{V_QN+jj}, {jj*QS}, v{V_QN}")
    for t in range(32):
        a(f"v_mov_b32 v{V_S+t}, 0")
    a("s_waitcnt lgkmcnt(0)")

    vm = []
    def vmem(ins, tag):
        a(ins)
        vm.append(tag)
    def wait_tag(tags):
        last = max((t for t, x in enumerate(vm) if x in tags), default=None)
        assert last is not None, tags
        cnt = len(vm) - 1 - last
        assert cnt <= 63
        return cnt
    def wload_ops(i):
        ops = []
        if o.tail and i >= 12:
            sg = [3, 0, 1, 2][i - 12]
            ops.append(('s', f"s_lshl_b32 s{S_T0}, s{S_CB+sg}, 2"))
            ops.append(('s', f"s_add_u32 s{S_T0}, s{S_T0}, s{S_WQ+3}"))
            ops.append(('s', f"s_lshl_b32 s{S_T1}, s{S_CB+sg}, 1"))
            ops.append(('s', f"s_add_u32 s{S_T1}, s{S_T1}, s{S_SQ+3}"))
            vq, vs = V_QT, V_ST
        else:
            ops.append(('s', f"s_add_u32 s{S_T0}, s{S_WQ + i//4}, {(i%4)*8*QS}"))
            ops.append(('s', f"s_add_u32 s{S_T1}, s{S_SQ + i//4}, {(i%4)*SS}"))
            vq, vs = V_QN, V_SN
        ops.append(('v', f"buffer_load_short_d16_hi v{V_S+i}, v{vs}, s[{SRD_S}:{SRD_S+3}], s{S_T1} offen"))
        ops.append(('v', f"buffer_load_short_d16_hi v{V_Z+i}, v{vs}, s[{SRD_Z}:{SRD_Z+3}], s{S_T1} offen"))
        for jj in range(4):
            ops.append(('v', f"buffer_load_dword v{V_RAW+4*i+jj}, v{vq+jj}, s[{SRD_Q}:{SRD_Q+3}], s{S_T0} offen"))
        return ops
    def emit_wload(i):
        for kind, ins in wload_ops(i):
            if kind == 's':
                a(ins)
            else:
                vmem(ins, ('w', i))
    for i in range(min(o.WL, 16)):
        emit_wload(i)
    a(f"s_mov_b32 s{S_MASK0}, 0x000f000f")
    a(f"s_mov_b32 s{S_MASK1}, 0x00f000f0")
    a(f"s_lshl_b32 s{S_T2}, s{S_W4}, 12")
    a(f"v_lshlrev_b32 v6, 10, v3")
    a(f"v_lshl_add_u32 v6, v2, 4, v6")
    a(f"v_add_u32 v6, s{S_T2}, v6")
    a(f"v_add_u32 v{V_LW}, {WBASE}, v6")
    a(f"s_mul_i32 s{S_T2}, s{S_W4}, {8*QS}")
    a(f"v_mul_u32_u24 v6, {4*QS}, v5")
    a(f"v_lshl_add_u32 v6, v4, 2, v6")
    a(f"v_add_u32 v{V_QT}, s{S_T2}, v6")
    for jj in range(1, 4):
        a(f"v_add_u32 v{V_QT+jj}, {jj*QS}, v{V_QT}")
    a(f"s_mul_i32 s{S_T2}, s{S_W4}, {SS}")
    a(f"v_lshlrev_b32 v6, 1, v4")
    a(f"v_add_u32 v{V_ST}, s{S_T2}, v6")

    def dq_ops(i):
        ops = []
        ops.append(f"v_mul_f32 v{V_C1}, 0x4b800000, v{V_S+i}")
        ops.append(f"v_mul_f32 v{V_C2}, 0x49800000, v{V_S+i}")
        ops.append(f"v_mul_f32_e64 v{V_C0}, -v{V_Z+i}, v{V_S+i}")
        for jj in range(4):
            p = V_RAW + 4*i + jj
            A = V_A + 5*(jj % 2)
            F = V_F + 8*(jj % 2)
            P = V_P + 4*jj
            ops.append(f"v_and_b32 v{A}, s{S_MASK0}, v{p}")
            ops.append(f"v_and_b32 v{A+1}, s{S_MASK1}, v{p}")
            ops.append(f"v_lshrrev_b32 v{A+4}, 8, v{p}")
            ops.append(f"v_and_b32 v{A+2}, s{S_MASK0}, v{A+4}")
            ops.append(f"v_and_b32 v{A+3}, s{S_MASK1}, v{A+4}")
            for hi in range(2):
                for t in range(4):
                    c = V_C1 if t % 2 == 0 else V_C2
                    ops.append(f"v_fma_mix_f32 v{F+4*hi+t}, v{A+t}, v{c}, v{V_C0} op_sel:[{hi},0,0] op_sel_hi:[1,0,0]")
            for t in range(4):
                ops.append(f"v_cvt_pk_bf16_f32 v{P+t}, v{F+2*t}, v{F+2*t+1}")
            ops.append(f"ds_write_b128 v{V_LW}, {vr(P)} offset:{(i%2)*16384 + jj*256}")
        return ops

    for i in range(-1, 15):
        wi = i + 1
        vops = []
        for j in sorted(d):
            if d[j] == i:
                for pre, ins in dma_ops(j):
                    vops.append((pre, ins, ('x', j)))
        nl = wi + o.WL
        lops = wload_ops(nl) if nl < 16 else []
        dq = dq_ops(wi)
        a(f"s_waitcnt vmcnt({wait_tag([('w', wi)])})")
        nv = len(vops)
        gap = max(1, (len(dq) - 12) // max(nv, 1))
        vi = 0
        for t, op in enumerate(dq):
            if vi < nv and t % gap == 0 and t >= 1:
                pre, ins, tag = vops[vi]
                vmem(ins, tag)
                vi += 1
            if vi < nv and (t + 1) % gap == 0 and vops[vi][0]:
                a(vops[vi][0])
            a(op)
        while vi < nv:
            pre, ins, tag = vops[vi]
            if pre:
                a(pre); a("s_nop 0")
            vmem(ins, tag)
            vi += 1
        for kind, ins in lops:
            if kind == 's':
                a(ins)
            else:
                vmem(ins, ('w', nl))
        need = [('x', j) for j in range(4, 16) if r[j] == i + 1]
        if need:
            a(f"s_waitcnt vmcnt({wait_tag(need)}) lgkmcnt(0)")
        else:
            a("s_waitcnt lgkmcnt(0)")
        if wi in (0, 1, 4, 8, 12, 15):
            stamp(a, o, {0: 1, 1: 2, 4: 3, 8: 4, 12: 5, 15: 6}[wi])
        a("s_barrier")
    if o.stamps:
        write_stamps(a, 7)
    a.label("L_end")
    a("s_endpgm")


def gen(o):
    a = Asm()
    common_prologue(a, o)
    ml = consumer(a, o)
    a.lines.append(".p2align 6")
    producer(a, o)
    body = a.text()
    out = HEADER
    out += "; Override launch geometry by editing the next line (default: block=256,\n"
    out += "; grid=ceil(out_elems/256), lds=0). Harness parses it; keep it on one line.\n"
    out += f"; @launch grid=(256,1,1) block=(512,1,1) lds={LDS_BYTES}\n"
    out += f'.amdgcn_target "amdgcn-amd-amdhsa--gfx950"\n.text\n.globl {NAME}_kernel\n.p2align 8\n.type {NAME}_kernel,@function\n{NAME}_kernel:\n'
    out += body
    out += f""".section .rodata,"a"
.p2align 6
.amdhsa_kernel {NAME}_kernel
  .amdhsa_next_free_vgpr 256
  .amdhsa_next_free_sgpr 102
  .amdhsa_accum_offset 256
  .amdhsa_group_segment_fixed_size 0
  .amdhsa_kernarg_size 64
  .amdhsa_user_sgpr_count 2
  .amdhsa_user_sgpr_kernarg_segment_ptr 1
  .amdhsa_system_sgpr_workgroup_id_x 1
  .amdhsa_float_denorm_mode_32 3
  .amdhsa_float_denorm_mode_16_64 3
.end_amdhsa_kernel
"""
    return out, ml


if __name__ == "__main__":
    o = Opt()
    outp = sys.argv[1]
    for kv in sys.argv[2:]:
        k, v = kv.split("=", 1)
        cur = getattr(o, k)
        if isinstance(cur, bool):
            v = v not in ("0", "False", "false")
        elif isinstance(cur, int):
            v = int(v)
        setattr(o, k, v)
    s, ml = gen(o)
    open(outp, "w").write(s)
    print("written", outp, "max live frags", ml, "lines", s.count("\n"))
```

```python
import sys, re

NAME = "standalone__weight_only_int_gptq__prompt"
HEADER = open("cdna_kernels/%s.s.ref" % NAME).read().split("; Override launch")[0]

XS = 2048
QS = 14336
SS = 7168
L_W = 0
L_C = 16384
L_X = 40960
XSLOT = 30720
LDS_BYTES = 163840


class Opt:
    U = 2
    P15 = 10
    P14 = 8
    LA15 = 10
    LA14 = 8
    G15 = 3
    G14 = 4
    cap = 2
    wpos = 1
    st_flags = "sc0 sc1"
    prio_m = 3
    prio_h = 0
    stamps = False
    rotmul = 4
    rotmask = 15
    pre = 2
    mainhi = False
    nodq = False
    nodma = False
    nord = False
    pad = 0
    cst = "K,W0,B0a,B0p,L1,L2,E0,E1,E2"
    pst = "K,C0,C1,B0a,B0p,B1a,B2a,B3a,X"


class Asm:
    def __init__(self):
        self.lines = []
    def __call__(self, s):
        self.lines.append("    " + s)
    def label(self, s):
        self.lines.append(s + ":")
    def c(self, s):
        self.lines.append("    ; " + s)
    def text(self):
        return "\n".join(self.lines) + "\n"


def vr(b, n=4):
    return f"v[{b}:{b+n-1}]"


SRD_X, SRD_Q, SRD_S, SRD_Z, SRD_O = 4, 8, 12, 16, 20
S_WAVE = 24
S_W4 = 25
S_CG, S_RP, S_RB0, S_ROT = 26, 27, 28, 29
S_T0, S_T1, S_T2, S_T3 = 30, 31, 32, 33
S_MASK0, S_MASK1 = 34, 35
S_CNT = 36
S_DX = 37
S_ROW = 38
S_XROW, S_KOFF, S_XL, S_WOFF, S_WL, S_HAS8, S_XCUR, S_XL0, S_WL0 = 40, 41, 42, 43, 44, 45, 46, 47, 48
S_STAMP = 72


def stamp(a, o, name, role):
    lst = (o.cst if role == 'c' else o.pst).split(",")
    if o.stamps and name in lst:
        idx = 1 + lst.index(name)
        a(f"s_memtime s[{S_STAMP+2*idx}:{S_STAMP+2*idx+1}]")


def write_stamps(a, o):
    n = 12
    a(f"s_memrealtime s[{S_STAMP+22}:{S_STAMP+23}]")
    a("s_waitcnt lgkmcnt(0)")
    a("s_mov_b32 s4, s100")
    a("s_mov_b32 s5, s101")
    a("s_mov_b32 s6, 0x1000000")
    a("s_mov_b32 s7, 0x00020000")
    a("s_lshl_b32 s30, s2, 3")
    if o.mainhi:
        a(f"s_xor_b32 s31, s{S_WAVE}, 4")
        a("s_add_u32 s30, s30, s31")
    else:
        a(f"s_add_u32 s30, s30, s{S_WAVE}")
    a("s_lshl_b32 s30, s30, 7")
    a("v_mov_b32 v1, 0")
    for t in range(n):
        a(f"v_mov_b32 v2, s{S_STAMP+2*t}")
        a(f"v_mov_b32 v3, s{S_STAMP+2*t+1}")
        a(f"buffer_store_dwordx2 v[2:3], v1, s[4:7], s30 offen offset:{8*t}")
        a("s_nop 1")
    a("s_waitcnt vmcnt(0)")


def common_prologue(a, o):
    a("s_load_dwordx2 s[4:5], s[0:1], 0")
    a("s_load_dwordx2 s[8:9], s[0:1], 8")
    a("s_load_dwordx2 s[12:13], s[0:1], 16")
    a("s_load_dwordx2 s[16:17], s[0:1], 24")
    a("s_load_dwordx2 s[20:21], s[0:1], 40")
    if o.stamps:
        a("s_load_dwordx2 s[100:101], s[0:1], 56")
        a(f"s_memtime s[{S_STAMP}:{S_STAMP+1}]")
        a(f"s_memrealtime s[{S_STAMP+20}:{S_STAMP+21}]")
    a("v_lshrrev_b32 v1, 6, v0")
    a("v_and_b32 v0, 63, v0")
    a(f"s_and_b32 s{S_T0}, s2, 7")
    a(f"s_lshr_b32 s{S_T1}, s2, 3")
    a(f"v_readfirstlane_b32 s{S_WAVE}, v1")
    a(f"s_and_b32 s{S_T2}, s{S_T0}, 1")
    a(f"s_add_u32 s{S_T2}, s{S_T2}, 31")
    a(f"s_cmp_ge_u32 s{S_T1}, s{S_T2}")
    a("s_cbranch_scc1 L_end")
    a(f"s_mul_i32 s{S_T0}, s{S_T0}, 63")
    a(f"s_lshr_b32 s{S_T0}, s{S_T0}, 1")
    a(f"s_add_u32 s{S_T0}, s{S_T0}, s{S_T1}")
    a(f"s_mul_i32 s{S_RP}, s{S_T0}, 2341")
    a(f"s_lshr_b32 s{S_RP}, s{S_RP}, 16")
    a(f"s_mul_i32 s{S_T1}, s{S_RP}, 28")
    a(f"s_sub_u32 s{S_CG}, s{S_T0}, s{S_T1}")
    a(f"s_mul_i32 s{S_RB0}, s{S_RP}, 14")
    a(f"s_lshr_b32 s{S_T1}, s{S_RP}, 3")
    a(f"s_add_u32 s{S_RB0}, s{S_RB0}, s{S_T1}")
    a(f"s_mul_i32 s{S_ROT}, s{S_CG}, {o.rotmul}")
    a(f"s_and_b32 s{S_ROT}, s{S_ROT}, {o.rotmask}")
    a(f"s_and_b32 s{S_W4}, s{S_WAVE}, 3")
    a(f"s_mov_b32 s10, {128*QS}")
    a("s_mov_b32 s11, 0x00020000")
    a(f"s_mov_b32 s14, {16*SS}")
    a("s_mov_b32 s15, 0x00020000")
    a(f"s_mov_b32 s18, {16*SS}")
    a("s_mov_b32 s19, 0x00020000")
    a("v_and_b32 v2, 15, v0")
    a("v_lshrrev_b32 v3, 4, v0")
    a(f"s_cmp_ge_u32 s{S_WAVE}, 4")
    a("s_cbranch_scc0 L_helper" if o.mainhi else "s_cbranch_scc1 L_helper")


V_XA = 10
V_WA, V_PA, V_QA, V_O = 14, 15, 16, 17
V_RAW = 20
V_CST = 28
V_TMP = 44
V_WF = 60
V_XP = 76
V_ACC = 136


def dq_ops(raw, c1, c2, c0, dst):
    A = V_TMP
    F = V_TMP + 5
    ops = [f"v_and_b32 v{A}, s{S_MASK0}, v{raw}",
           f"v_lshrrev_b32 v{A+4}, 8, v{raw}",
           f"v_and_b32 v{A+1}, s{S_MASK1}, v{raw}",
           f"v_and_b32 v{A+2}, s{S_MASK0}, v{A+4}",
           f"v_and_b32 v{A+3}, s{S_MASK1}, v{A+4}"]
    for hi in range(2):
        for t in range(4):
            c = c1 if t % 2 == 0 else c2
            ops.append(f"v_fma_mix_f32 v{F+4*hi+t}, v{A+t}, v{c}, v{c0} op_sel:[{hi},0,0] op_sel_hi:[1,0,0]")
    for t in range(4):
        ops.append(f"v_cvt_pk_bf16_f32 v{dst+t}, v{F+2*t}, v{F+2*t+1}")
    return ops


def dq_step(par, ks):
    ops = []
    C = V_CST + 8*par
    for b in range(2):
        ops += dq_ops(V_RAW + 4*par + 2*ks + b, C + 2*b, C + 2*b + 1, C + 4 + b, V_WF + 8*ks + 4*b)
    return ops


def acc(rb, b):
    return V_ACC + 8*rb + 4*b


def main_prologue(a, o):
    if o.prio_m:
        a(f"s_setprio {o.prio_m}")
    a(f"s_lshl_b32 s{S_T0}, s{S_W4}, 4")
    a(f"v_add_u32 v4, s{S_T0}, v2")
    a(f"v_mul_u32_u24 v5, {QS}, v3")
    a("v_lshl_add_u32 v5, v4, 3, v5")
    a("v_lshlrev_b32 v6, 2, v4")
    a(f"s_mul_i32 s{S_T0}, s{S_ROT}, {8*QS}")
    a(f"s_lshl_b32 s{S_T1}, s{S_CG}, 9")
    a(f"s_add_u32 s{S_T0}, s{S_T0}, s{S_T1}")
    a(f"s_add_u32 s{S_T1}, s{S_T0}, {4*QS}")
    a(f"s_mul_i32 s{S_T2}, s{S_ROT}, {SS}")
    a(f"s_lshl_b32 s{S_T3}, s{S_CG}, 8")
    a(f"s_add_u32 s{S_T2}, s{S_T2}, s{S_T3}")
    a("s_waitcnt lgkmcnt(0)")
    stamp(a, o, "K", 'c')
    a(f"buffer_load_dword v8, v6, s[{SRD_S}:{SRD_S+3}], s{S_T2} offen")
    a(f"buffer_load_dword v9, v6, s[{SRD_Z}:{SRD_Z+3}], s{S_T2} offen")
    a(f"buffer_load_dwordx2 v[{V_RAW}:{V_RAW+1}], v5, s[{SRD_Q}:{SRD_Q+3}], s{S_T0} offen")
    a(f"buffer_load_dwordx2 v[{V_RAW+2}:{V_RAW+3}], v5, s[{SRD_Q}:{SRD_Q+3}], s{S_T1} offen")
    a(f"s_mov_b32 s{S_MASK0}, 0x000f000f")
    a(f"s_mov_b32 s{S_MASK1}, 0x00f000f0")
    a(f"s_mov_b32 s22, {2048*SS}")
    a("s_mov_b32 s23, 0x00020000")
    a("v_lshrrev_b32 v7, 1, v2")
    a("v_xor_b32 v7, v7, v3")
    a("v_lshlrev_b32 v7, 4, v7")
    a("v_lshl_add_u32 v7, v2, 7, v7")
    a(f"v_add_u32 v{V_XA}, {L_X}, v7")
    a(f"v_xor_b32 v{V_XA+1}, 64, v{V_XA}")
    if o.U > 2:
        a(f"v_add_u32 v{V_XA+2}, {2*XSLOT}, v{V_XA}")
        a(f"v_add_u32 v{V_XA+3}, {2*XSLOT}, v{V_XA+1}")
    else:
        a(f"s_mov_b32 s{S_DX}, {2*XSLOT}")
    a("v_lshlrev_b32 v7, 9, v3")
    a(f"v_lshl_add_u32 v{V_WA}, v4, 3, v7")
    a(f"v_lshlrev_b32 v{V_PA}, 4, v4")
    a(f"v_add_u32 v{V_PA}, {L_C}, v{V_PA}")
    a(f"v_lshlrev_b32 v{V_QA}, 3, v4")
    a(f"v_add_u32 v{V_QA}, {L_C+1024}, v{V_QA}")
    a(f"v_mul_u32_u24 v7, {SS}, v2")
    a("v_lshl_add_u32 v7, v3, 4, v7")
    a(f"s_lshl_b32 s{S_T0}, s{S_W4}, 6")
    a(f"s_add_u32 s{S_T0}, s{S_T0}, s{S_T3}")
    a(f"v_add_u32 v{V_O}, s{S_T0}, v7")
    a(f"s_mul_i32 s{S_ROW}, s{S_RB0}, {16*SS}")
    a(f"s_mov_b32 s{S_CNT}, {16//o.U}")
    for r in range(120):
        a(f"v_mov_b32 v{V_ACC+r}, 0")
    a("s_waitcnt vmcnt(2)")
    C = V_CST
    a("v_lshlrev_b32 v4, 16, v8")
    a("v_and_b32 v5, 0xffff0000, v8")
    a("v_lshlrev_b32 v6, 16, v9")
    a("v_and_b32 v7, 0xffff0000, v9")
    a(f"v_mul_f32 v{C}, 0x4b800000, v4")
    a(f"v_mul_f32 v{C+1}, 0x49800000, v4")
    a(f"v_mul_f32 v{C+2}, 0x4b800000, v5")
    a(f"v_mul_f32 v{C+3}, 0x49800000, v5")
    a(f"v_mul_f32_e64 v{C+4}, -v6, v4")
    a(f"v_mul_f32_e64 v{C+5}, -v7, v5")
    a("s_waitcnt vmcnt(0)")
    stamp(a, o, "W0", 'c')
    for op in dq_step(0, 0):
        a(op)
    stamp(a, o, "B0a", 'c')
    a("s_barrier")
    stamp(a, o, "B0p", 'c')
    a(f"s_cmp_ge_u32 s{S_RP}, 7")
    a("s_cbranch_scc1 L_main15")


def main_variant(a, o, R):
    P = o.P15 if R == 15 else o.P14
    LA = o.LA15 if R == 15 else o.LA14
    G = o.G15 if R == 15 else o.G14
    U = o.U
    NF = U * 2 * R
    NG = 2 * NF
    assert NF % P == 0 and NF % G == 0 and LA <= P and G <= LA, (NF, P, G, LA)

    def xread(F):
        s, rem = divmod(F, 2*R)
        ks, rb = divmod(rem, R)
        if U == 2:
            va = V_XA + ks
        else:
            va = V_XA + 2*((s % 4)//2) + ks
        return f"ds_read_b128 {vr(V_XP + 4*(F % P))}, v{va} offset:{(s % 2)*XSLOT + rb*2048}"

    nv = [[] for _ in range(NG)]
    va = [[] for _ in range(NG)]
    for F in range(LA, LA + NF):
        g = 2*(F - LA) + 1
        if F % (2*R) == 0:
            nv[g-1].append(("s_barrier", 'b', None))
        nv[g].append((xread(F), 'r', ('x', F % NF)))
    waitgaps = {}
    for F in range(0, NF, G):
        waitgaps[(2*F - o.wpos) % NG] = F
    def free_gap(lo, hi, step=1):
        best = None
        for g in range(lo, hi):
            load = len(nv[g]) + len(va[g]) + (1 if g in waitgaps else 0)
            if best is None or load < best[0]:
                best = (load, g)
        return best[1]
    for s in range(U):
        b0 = s * 4 * R
        par = (s + 1) % 2
        if U == 2:
            o0 = 8 if s == 0 else 0
        else:
            o0 = 8 * ((s + 1) % 4)
        g = free_gap(b0 + 2, b0 + 8)
        nv[g].append((f"ds_read2st64_b64 {vr(V_RAW + 4*par)}, v{V_WA} offset0:{o0} offset1:{o0+4}", 'r', ('w', s)))
        if U == 2 and s == 0:
            g2 = free_gap(g + 1, g + 12)
            va[g2].append(f"v_xor_b32 v{V_WA}, 0x2000, v{V_WA}")
        g = free_gap(b0 + 2, b0 + 10)
        nv[g].append((f"ds_read_b128 {vr(V_CST + 8*par)}, v{V_PA} offset:{(s+1)*1536}", 'r', ('p', s)))
        if s == U - 1 and U < 16:
            g2 = free_gap(g + 1, g + 16)
            va[g2].append(f"v_add_u32 v{V_PA}, {U*1536}, v{V_PA}")
        g = free_gap(b0 + 2, b0 + 12)
        nv[g].append((f"ds_read_b64 {vr(V_CST + 8*par + 4, 2)}, v{V_QA} offset:{(s+1)*1536}", 'r', ('q', s)))
        if s == U - 1 and U < 16:
            g2 = free_gap(g + 1, g + 16)
            va[g2].append(f"v_add_u32 v{V_QA}, {U*1536}, v{V_QA}")
    if U == 2:
        glo = 2*(3*R - 1 - LA) + 2
        ghi = 2*(4*R - LA) + 1
        g = free_gap(glo, ghi)
        va[g].append(f"v_add_u32 v{V_XA}, s{S_DX}, v{V_XA}")
        glo = 2*(4*R - 1 - LA) + 2
        g = free_gap(glo, NG - 3)
        va[g].append(f"v_add_u32 v{V_XA+1}, s{S_DX}, v{V_XA+1}")
        g = free_gap(g + 1, NG - 1)
        nv[g].append((f"s_sub_u32 s{S_DX}, 0, s{S_DX}", 's', None))
        gl = g
    else:
        gl = NG - 12
    if U < 16:
        g = free_gap(gl + 1, NG) if gl + 1 < NG else NG - 1
        nv[g].append((f"s_sub_u32 s{S_CNT}, s{S_CNT}, 1", 's', None))
        nv[g].append((f"s_cmp_lg_u32 s{S_CNT}, 0", 's', None))
    over = 0
    for s in range(U):
        for ks in range(2):
            b0 = s*4*R + ks*2*R
            ops = dq_step(s % 2, 1) if ks == 0 else dq_step((s + 1) % 2, 0)
            if o.nodq:
                ops = []
            gaps = list(range(b0, b0 + 2*R))
            def load(g):
                return len(nv[g]) + len(va[g]) + (1 if g in waitgaps else 0) + (1 if (g == NG - 1 and U < 16) else 0)
            room = {g: max(0, min(2 - len(va[g]), o.cap - load(g))) for g in gaps}
            tot = sum(room.values())
            extra = len(ops) - tot
            if extra > 0:
                over += extra
                cand = sorted(gaps, key=lambda g: (room[g] + len(va[g]), g))
                cand = [g for g in gaps if room[g] + len(va[g]) < 2]
                step = len(cand) / extra
                for t in range(extra):
                    room[cand[int((t + 0.5) * step)]] += 1
            else:
                surplus = -extra
                while surplus > 0:
                    mx = max(room[g] + load(g) for g in gaps if room[g] > 0)
                    cand = [g for g in gaps if room[g] > 0 and room[g] + load(g) == mx]
                    k = min(surplus, len(cand))
                    step = len(cand) / k
                    for t in range(k):
                        room[cand[int((t + 0.5) * step)]] -= 1
                    surplus -= k
            it = iter(ops)
            for g in gaps:
                for _ in range(room[g]):
                    va[g].append(next(it))
    order = []
    for g in range(NG):
        for t, kind, key in nv[g]:
            if kind == 'r':
                order.append((g, key))
    def wait_count(g, F):
        need = ('x', (F + G - 1) % NF)
        idx = max((t for t, (gg, k) in enumerate(order) if gg <= g), default=-1)
        cnt = 0
        while order[idx % len(order)][1] != need:
            idx -= 1
            cnt += 1
        assert cnt <= 15
        return cnt

    a.label(f"L_main{R}")
    for F in range(LA):
        a(xread(F))
    a(f"s_waitcnt lgkmcnt({LA - G})")
    for _ in range(o.pad):
        a("s_nop 0")
    a.label(f"L_loop{R}")
    for n in range(NG):
        F = n // 2
        s, rem = divmod(F, 2*R)
        ks, rb = divmod(rem, R)
        b = n % 2
        if U == 16 and n % (4*R) == 0:
            stamp(a, o, f"L{s}", 'c')
        a(f"v_mfma_f32_16x16x32_bf16 {vr(acc(rb, b))}, {vr(V_WF + 8*ks + 4*b)}, {vr(V_XP + 4*(F % P))}, {vr(acc(rb, b))}")
        for t, kind, key in nv[n]:
            if o.nord and kind == 'r' and key[0] == 'x':
                continue
            a(t)
        if n in waitgaps and o.wpos > 1:
            a(f"s_waitcnt lgkmcnt({wait_count(n, waitgaps[n])})")
        for t in va[n]:
            a(t)
        if n in waitgaps and o.wpos == 1:
            a(f"s_waitcnt lgkmcnt({wait_count(n, waitgaps[n])})")
    if U < 16:
        a(f"s_cbranch_scc1 L_loop{R}")
    stamp(a, o, "E0", 'c')
    for rb in range(R):
        if rb == R - 2:
            a("s_nop 1")
        for r in range(4):
            a(f"v_cvt_pk_bf16_f32 v{acc(rb,0)+r}, v{acc(rb,0)+r}, v{acc(rb,1)+r}")
        a(f"buffer_store_dwordx4 {vr(acc(rb,0))}, v{V_O}, s[{SRD_O}:{SRD_O+3}], s{S_ROW} offen {o.st_flags}".rstrip())
        if rb < R - 1:
            a(f"s_add_u32 s{S_ROW}, s{S_ROW}, {16*SS}")
    if o.stamps:
        stamp(a, o, "E1", 'c')
        a("s_waitcnt vmcnt(0)")
        stamp(a, o, "E2", 'c')
        write_stamps(a, o)
    a("s_endpgm")
    return over


def helper(a, o):
    V_XO, V_WO, V_CO, V_CP, V_CQ = 10, 11, 12, 13, 14
    V_S, V_Z = 16, 20
    V_T = 24
    V_PO = 32
    V_QO = 48
    a.label("L_helper")
    if o.prio_h:
        a(f"s_setprio {o.prio_h}")
    a(f"s_lshl_b32 s{S_T0}, s{S_W4}, 2")
    a(f"v_add_u32 v4, s{S_T0}, v3")
    a(f"v_add_u32 v5, s{S_ROT}, v4")
    a("v_and_b32 v5, 15, v5")
    a(f"v_mul_u32_u24 v5, {SS}, v5")
    a(f"v_lshl_add_u32 v{V_CO}, v2, 4, v5")
    a(f"s_lshl_b32 s{S_T3}, s{S_CG}, 8")
    a(f"s_and_b32 s{S_T0}, s{S_W4}, 1")
    a(f"s_lshl_b32 s{S_T0}, s{S_T0}, 2")
    a("v_and_b32 v5, 7, v0")
    a("v_xor_b32 v5, v5, v3")
    a(f"v_xor_b32 v5, s{S_T0}, v5")
    a("v_lshlrev_b32 v5, 4, v5")
    a("v_lshrrev_b32 v6, 3, v0")
    a(f"v_lshl_add_u32 v{V_XO}, v6, 11, v5")
    a("s_mov_b32 s6, 0x400000")
    a("s_mov_b32 s7, 0x00020000")
    a(f"s_lshl_b32 s{S_XROW}, s{S_RB0}, 15")
    a(f"s_lshl_b32 s{S_T0}, s{S_W4}, 14")
    a(f"s_add_u32 s{S_XROW}, s{S_XROW}, s{S_T0}")
    a(f"s_lshl_b32 s{S_KOFF}, s{S_ROT}, 7")
    a(f"s_lshl_b32 s{S_T0}, s{S_W4}, 10")
    a(f"s_add_u32 s{S_XL0}, s{S_T0}, {L_X}")
    a(f"s_mov_b32 s{S_XL}, s{S_XL0}")
    a("v_lshrrev_b32 v5, 5, v0")
    a(f"v_mul_u32_u24 v5, {QS}, v5")
    a("v_and_b32 v6, 31, v0")
    a(f"v_lshl_add_u32 v5, v6, 4, v5")
    a(f"s_mul_i32 s{S_T1}, s{S_W4}, {2*QS}")
    a(f"s_lshl_b32 s{S_T2}, s{S_CG}, 9")
    a(f"s_add_u32 s{S_T1}, s{S_T1}, s{S_T2}")
    a(f"v_add_u32 v{V_WO}, s{S_T1}, v5")
    a(f"s_add_u32 s{S_WOFF}, s{S_ROT}, 1")
    a(f"s_and_b32 s{S_WOFF}, s{S_WOFF}, 15")
    a(f"s_mul_i32 s{S_WOFF}, s{S_WOFF}, {8*QS}")
    a(f"s_add_u32 s{S_WL}, s{S_T0}, {L_W + 4096}")
    a(f"s_cmp_ge_u32 s{S_RP}, 7")
    a(f"s_cselect_b32 s{S_HAS8}, 2, 0")
    a(f"s_cmp_lt_u32 s{S_W4}, s{S_HAS8}")
    a(f"s_cselect_b32 s{S_HAS8}, 1, 0")
    a("s_waitcnt lgkmcnt(0)")
    stamp(a, o, "K", 'p')
    a(f"buffer_load_dwordx4 {vr(V_S)}, v{V_CO}, s[{SRD_S}:{SRD_S+3}], s{S_T3} offen")
    a(f"buffer_load_dwordx4 {vr(V_Z)}, v{V_CO}, s[{SRD_Z}:{SRD_Z+3}], s{S_T3} offen")

    uid = [0]
    def issue(dma=True):
        uid[0] += 1
        u = uid[0]
        a(f"s_add_u32 s{S_XCUR}, s{S_XROW}, s{S_KOFF}")
        a(f"s_mov_b32 m0, s{S_XL}")
        a(f"s_add_u32 s{S_KOFF}, s{S_KOFF}, 128")
        for t in range(8):
            if t == 7:
                a(f"s_cmp_eq_u32 s{S_HAS8}, 0")
                a(f"s_cbranch_scc1 L_h8_{u}")
            if dma:
                a(f"buffer_load_dwordx4 v{V_XO}, s[{SRD_X}:{SRD_X+3}], s{S_XCUR} offen lds")
            if t < 7:
                a(f"s_add_u32 m0, m0, 4096")
                a(f"s_add_u32 s{S_XCUR}, s{S_XCUR}, 65536")
        a.label(f"L_h8_{u}")
        a(f"s_mov_b32 m0, s{S_WL}")
        a(f"s_and_b32 s{S_KOFF}, s{S_KOFF}, 2047")
        if dma:
            a(f"buffer_load_dwordx4 v{V_WO}, s[{SRD_Q}:{SRD_Q+3}], s{S_WOFF} offen lds")
        a(f"s_add_u32 s{S_WOFF}, s{S_WOFF}, {8*QS}")
        a(f"s_cmp_eq_u32 s{S_WOFF}, {128*QS}")
        a(f"s_cselect_b32 s{S_WOFF}, 0, s{S_WOFF}")
        a(f"s_add_u32 s{S_WL}, s{S_WL}, 4096")
        a(f"s_and_b32 s{S_WL}, s{S_WL}, 16383")
        a(f"s_add_u32 s{S_XL}, s{S_XL}, {XSLOT}")
        a(f"s_cmp_ge_u32 s{S_XL}, {L_X + 4*XSLOT}")
        a(f"s_cselect_b32 s{S_XL}, s{S_XL0}, s{S_XL}")
    def wait_keep(n):
        uid[0] += 1
        u = uid[0]
        if n == 0:
            a("s_waitcnt vmcnt(0)")
            return
        a(f"s_cmp_eq_u32 s{S_HAS8}, 0")
        a(f"s_cbranch_scc1 L_w8_{u}")
        a(f"s_waitcnt vmcnt({9*n})")
        a(f"s_branch L_w9_{u}")
        a.label(f"L_w8_{u}")
        a(f"s_waitcnt vmcnt({8*n})")
        a.label(f"L_w9_{u}")

    for i in range(o.pre):
        issue()
    a(f"v_mul_u32_u24 v5, 1536, v4")
    a(f"v_lshl_add_u32 v{V_CP}, v2, 6, v5")
    a(f"v_lshl_add_u32 v{V_CQ}, v2, 5, v5")
    wait_keep(o.pre)
    stamp(a, o, "C0", 'p')
    for d in range(4):
        T = V_T
        a(f"v_lshlrev_b32 v{T}, 16, v{V_S+d}")
        a(f"v_and_b32 v{T+1}, 0xffff0000, v{V_S+d}")
        a(f"v_lshlrev_b32 v{T+2}, 16, v{V_Z+d}")
        a(f"v_and_b32 v{T+3}, 0xffff0000, v{V_Z+d}")
        a(f"v_mul_f32 v{V_PO+4*d}, 0x4b800000, v{T}")
        a(f"v_mul_f32 v{V_PO+4*d+1}, 0x49800000, v{T}")
        a(f"v_mul_f32 v{V_PO+4*d+2}, 0x4b800000, v{T+1}")
        a(f"v_mul_f32 v{V_PO+4*d+3}, 0x49800000, v{T+1}")
        a(f"v_mul_f32_e64 v{V_QO+2*d}, -v{T+2}, v{T}")
        a(f"v_mul_f32_e64 v{V_QO+2*d+1}, -v{T+3}, v{T+1}")
        a(f"ds_write_b128 v{V_CP}, {vr(V_PO+4*d)} offset:{L_C + 16*d}")
    a(f"ds_write_b128 v{V_CQ}, {vr(V_QO)} offset:{L_C + 1024}")
    a(f"ds_write_b128 v{V_CQ}, {vr(V_QO+4)} offset:{L_C + 1024 + 16}")
    stamp(a, o, "C1", 'p')
    wait_keep(o.pre - 1)
    a("s_waitcnt lgkmcnt(0)")
    stamp(a, o, "B0a", 'p')
    a("s_barrier")
    stamp(a, o, "B0p", 'p')
    b = 0
    nxt = o.pre
    while nxt > b + 2:
        if nxt <= 3:
            issue(not o.nodma)
            nxt += 1
        wait_keep(nxt - 1 - (b + 1))
        stamp(a, o, f"B{b+1}a", 'p')
        a("s_barrier")
        b += 1
    n_it = 14 - b
    a(f"s_mov_b32 s{S_CNT}, {n_it}")
    a.label("L_hloop")
    issue(not o.nodma)
    wait_keep(1)
    a("s_barrier")
    a(f"s_sub_u32 s{S_CNT}, s{S_CNT}, 1")
    a(f"s_cmp_lg_u32 s{S_CNT}, 0")
    a("s_cbranch_scc1 L_hloop")
    a("s_waitcnt vmcnt(0)")
    a("s_barrier")
    a("s_barrier")
    stamp(a, o, "X", 'p')
    if o.stamps:
        write_stamps(a, o)
    a.label("L_end")
    a("s_endpgm")


def regs_of(tok):
    out = set()
    for m in re.finditer(r"\bv\[(\d+):(\d+)\]|\bv(\d+)\b", tok):
        if m.group(3) is not None:
            out.add(int(m.group(3)))
        else:
            out.update(range(int(m.group(1)), int(m.group(2)) + 1))
    return out


def verify_main(lines, R, o):
    txt = [l.strip() for l in lines]
    i0 = txt.index(f"L_main{R}:")
    il = txt.index(f"L_loop{R}:")
    ie = next(i for i in range(il, len(txt)) if txt[i].startswith("s_endpgm"))
    if o.U < 16:
        ib = txt.index(f"s_cbranch_scc1 L_loop{R}")
        seq = txt[i0+1:il] + txt[il+1:ib] * 3 + txt[ib+1:ie]
    else:
        seq = txt[i0+1:il] + txt[il+1:ie]
    pend = []
    lastv = {}
    lastm = {}
    for n, ins in enumerate(seq):
        op = ins.split()[0]
        if op == "s_waitcnt":
            m = re.search(r"lgkmcnt\((\d+)\)", ins)
            if m:
                k = int(m.group(1))
                while len(pend) > k:
                    pend.pop(0)
            continue
        rs = regs_of(ins)
        for p in pend:
            assert not (p & rs), f"pending LDS read hazard at {n}: {ins}"
        args = ins[len(op):].split(",")
        if op.startswith("ds_read"):
            pend.append(regs_of(args[0]))
            assert len(pend) <= 15
        elif op.startswith("v_mfma"):
            for r in regs_of(",".join(args[1:])):
                assert n - lastv.get(r, -99) > 2, f"VALU->MFMA hazard at {n}: {ins}"
            for r in regs_of(args[0]):
                lastm[r] = n
        elif op.startswith("v_") or op.startswith("buffer"):
            for r in rs:
                assert n - lastm.get(r, -99) > 8, f"MFMA->VALU hazard at {n}: {ins}"
            if op.startswith("v_"):
                for r in regs_of(args[0]):
                    lastv[r] = n


def gen(o):
    a = Asm()
    common_prologue(a, o)
    main_prologue(a, o)
    ov14 = main_variant(a, o, 14)
    a.lines.append(".p2align 6")
    ov15 = main_variant(a, o, 15)
    a.lines.append(".p2align 6")
    helper(a, o)
    if not (o.nord or o.nodq):
        verify_main(a.lines, 14, o)
        verify_main(a.lines, 15, o)
    body = a.text()
    out = HEADER
    out += "; Override launch geometry by editing the next line (default: block=256,\n"
    out += "; grid=ceil(out_elems/256), lds=0). Harness parses it; keep it on one line.\n"
    out += f"; @launch grid=(256,1,1) block=(512,1,1) lds={LDS_BYTES}\n"
    out += f'.amdgcn_target "amdgcn-amd-amdhsa--gfx950"\n.text\n.globl {NAME}_kernel\n.p2align 8\n.type {NAME}_kernel,@function\n{NAME}_kernel:\n'
    out += body
    out += f""".section .rodata,"a"
.p2align 6
.amdhsa_kernel {NAME}_kernel
  .amdhsa_next_free_vgpr 256
  .amdhsa_next_free_sgpr 102
  .amdhsa_accum_offset 256
  .amdhsa_group_segment_fixed_size 0
  .amdhsa_kernarg_size 64
  .amdhsa_user_sgpr_count 2
  .amdhsa_user_sgpr_kernarg_segment_ptr 1
  .amdhsa_system_sgpr_workgroup_id_x 1
  .amdhsa_float_denorm_mode_32 3
  .amdhsa_float_denorm_mode_16_64 3
.end_amdhsa_kernel
"""
    return out, (ov14, ov15)


if __name__ == "__main__":
    o = Opt()
    outp = sys.argv[1]
    for kv in sys.argv[2:]:
        k, v = kv.split("=", 1)
        cur = getattr(o, k)
        if isinstance(cur, bool):
            v = v not in ("0", "False", "false")
        elif isinstance(cur, int):
            v = int(v)
        setattr(o, k, v)
    s, ov = gen(o)
    open(outp, "w").write(s)
    print("written", outp, "overflow", ov, "lines", s.count("\n"))
```

```python
import sys, re

NAME = "standalone__weight_only_int_gptq__prompt"
HEADER = open("cdna_kernels/%s.s.ref" % NAME).read().split("; Override launch")[0]

XS = 2048
QS = 14336
SS = 7168
L_W = 0
L_C = 16384
L_X = 40960
XSLOT = 30720
LDS_BYTES = 163840


class Opt:
    U = 2
    P15 = 10
    P14 = 8
    LA15 = 10
    LA14 = 8
    G15 = 3
    G14 = 4
    cap = 2
    wpos = 1
    st_flags = "sc0 sc1"
    prio_m = 3
    prio_h = 0
    stamps = False
    rotmul = 4
    rotmask = 15
    pre = 2
    mainhi = False
    nodq = False
    nodma = False
    nord = False
    dbg = False
    pad = 0
    cst = "K,W0,B0a,B0p,L1,L2,E0,E1,E2"
    pst = "K,C0,C1,B0a,B0p,B1a,B2a,B3a,X"


class Asm:
    def __init__(self):
        self.lines = []
    def __call__(self, s):
        self.lines.append("    " + s)
    def label(self, s):
        self.lines.append(s + ":")
    def c(self, s):
        self.lines.append("    ; " + s)
    def text(self):
        return "\n".join(self.lines) + "\n"


def vr(b, n=4):
    return f"v[{b}:{b+n-1}]"


SRD_X, SRD_Q, SRD_S, SRD_Z, SRD_O = 4, 8, 12, 16, 20
S_WAVE = 24
S_W4 = 25
S_CG, S_RP, S_RB0, S_ROT = 26, 27, 28, 29
S_T0, S_T1, S_T2, S_T3 = 30, 31, 32, 33
S_MASK0, S_MASK1 = 34, 35
S_CNT = 36
S_DX = 37
S_ROW = 38
S_XROW, S_KOFF, S_XL, S_WOFF, S_WL, S_HAS8, S_XCUR, S_XL0, S_WL0 = 40, 41, 42, 43, 44, 45, 46, 47, 48
S_STAMP = 72


def stamp(a, o, name, role):
    lst = (o.cst if role == 'c' else o.pst).split(",")
    if o.stamps and name in lst:
        idx = 1 + lst.index(name)
        a(f"s_memtime s[{S_STAMP+2*idx}:{S_STAMP+2*idx+1}]")


def write_stamps(a, o, role='c'):
    n = 12
    a(f"s_memrealtime s[{S_STAMP+22}:{S_STAMP+23}]")
    a("s_waitcnt lgkmcnt(0)")
    if o.dbg:
        a("s_mov_b32 s4, s100")
        a("s_mov_b32 s5, s101")
        a("s_mov_b32 s6, 256")
        a("s_mov_b32 s7, 0x00020000")
        a("s_mov_b64 exec, 1")
        a("v_mov_b32 v1, 0")
        def put(idx, sreg):
            a(f"v_mov_b32 v2, s{sreg}")
            a(f"buffer_atomic_umax v2, v1, s[4:7], 0 offen offset:{4*idx}")
            a("s_nop 1")
        a(f"s_and_b32 s30, s{S_STAMP+20}, 0xffffff")
        a(f"s_sub_u32 s31, 0x1000000, s30")
        put(0, 31)
        put(1, 30)
        a(f"s_and_b32 s30, s{S_STAMP+22}, 0xffffff")
        put(2, 30)
        lst = range(1, 10) if role == 'c' else range(1, 5)
        for t in lst:
            a(f"s_sub_u32 s30, s{S_STAMP+2*t}, s{S_STAMP}")
            put(2 + t if role == 'c' else 11 + t, 30)
        a("s_waitcnt vmcnt(0)")
        return
    a("s_mov_b32 s4, s100")
    a("s_mov_b32 s5, s101")
    a("s_mov_b32 s6, 0x1000000")
    a("s_mov_b32 s7, 0x00020000")
    a("s_lshl_b32 s30, s2, 3")
    if o.mainhi:
        a(f"s_xor_b32 s31, s{S_WAVE}, 4")
        a("s_add_u32 s30, s30, s31")
    else:
        a(f"s_add_u32 s30, s30, s{S_WAVE}")
    a("s_lshl_b32 s30, s30, 7")
    a("v_mov_b32 v1, 0")
    for t in range(n):
        a(f"v_mov_b32 v2, s{S_STAMP+2*t}")
        a(f"v_mov_b32 v3, s{S_STAMP+2*t+1}")
        a(f"buffer_store_dwordx2 v[2:3], v1, s[4:7], s30 offen offset:{8*t}")
        a("s_nop 1")
    a("s_waitcnt vmcnt(0)")


def common_prologue(a, o):
    a("s_load_dwordx2 s[4:5], s[0:1], 0")
    a("s_load_dwordx2 s[8:9], s[0:1], 8")
    a("s_load_dwordx2 s[12:13], s[0:1], 16")
    a("s_load_dwordx2 s[16:17], s[0:1], 24")
    a("s_load_dwordx2 s[20:21], s[0:1], 40")
    if o.stamps:
        a(f"s_load_dwordx2 s[100:101], s[0:1], {48 if o.dbg else 56}")
        a(f"s_memtime s[{S_STAMP}:{S_STAMP+1}]")
        a(f"s_memrealtime s[{S_STAMP+20}:{S_STAMP+21}]")
    a("v_lshrrev_b32 v1, 6, v0")
    a("v_and_b32 v0, 63, v0")
    a(f"s_and_b32 s{S_T0}, s2, 7")
    a(f"s_lshr_b32 s{S_T1}, s2, 3")
    a(f"v_readfirstlane_b32 s{S_WAVE}, v1")
    a(f"s_and_b32 s{S_T2}, s{S_T0}, 1")
    a(f"s_add_u32 s{S_T2}, s{S_T2}, 31")
    a(f"s_cmp_ge_u32 s{S_T1}, s{S_T2}")
    a("s_cbranch_scc1 L_end")
    a(f"s_mul_i32 s{S_T0}, s{S_T0}, 63")
    a(f"s_lshr_b32 s{S_T0}, s{S_T0}, 1")
    a(f"s_add_u32 s{S_T0}, s{S_T0}, s{S_T1}")
    a(f"s_mul_i32 s{S_RP}, s{S_T0}, 2341")
    a(f"s_lshr_b32 s{S_RP}, s{S_RP}, 16")
    a(f"s_mul_i32 s{S_T1}, s{S_RP}, 28")
    a(f"s_sub_u32 s{S_CG}, s{S_T0}, s{S_T1}")
    a(f"s_mul_i32 s{S_RB0}, s{S_RP}, 14")
    a(f"s_lshr_b32 s{S_T1}, s{S_RP}, 3")
    a(f"s_add_u32 s{S_RB0}, s{S_RB0}, s{S_T1}")
    a(f"s_mul_i32 s{S_ROT}, s{S_CG}, {o.rotmul}")
    a(f"s_and_b32 s{S_ROT}, s{S_ROT}, {o.rotmask}")
    a(f"s_and_b32 s{S_W4}, s{S_WAVE}, 3")
    a(f"s_mov_b32 s10, {128*QS}")
    a("s_mov_b32 s11, 0x00020000")
    a(f"s_mov_b32 s14, {16*SS}")
    a("s_mov_b32 s15, 0x00020000")
    a(f"s_mov_b32 s18, {16*SS}")
    a("s_mov_b32 s19, 0x00020000")
    a("v_and_b32 v2, 15, v0")
    a("v_lshrrev_b32 v3, 4, v0")
    a(f"s_cmp_ge_u32 s{S_WAVE}, 4")
    a("s_cbranch_scc0 L_helper" if o.mainhi else "s_cbranch_scc1 L_helper")


V_XA = 10
V_WA, V_PA, V_QA, V_O = 14, 15, 16, 17
V_RAW = 20
V_CST = 28
V_TMP = 44
V_WF = 60
V_XP = 76
V_ACC = 136


def dq_ops(raw, c1, c2, c0, dst):
    A = V_TMP
    F = V_TMP + 5
    ops = [f"v_and_b32 v{A}, s{S_MASK0}, v{raw}",
           f"v_lshrrev_b32 v{A+4}, 8, v{raw}",
           f"v_and_b32 v{A+1}, s{S_MASK1}, v{raw}",
           f"v_and_b32 v{A+2}, s{S_MASK0}, v{A+4}",
           f"v_and_b32 v{A+3}, s{S_MASK1}, v{A+4}"]
    for hi in range(2):
        for t in range(4):
            c = c1 if t % 2 == 0 else c2
            ops.append(f"v_fma_mix_f32 v{F+4*hi+t}, v{A+t}, v{c}, v{c0} op_sel:[{hi},0,0] op_sel_hi:[1,0,0]")
    for t in range(4):
        ops.append(f"v_cvt_pk_bf16_f32 v{dst+t}, v{F+2*t}, v{F+2*t+1}")
    return ops


def dq_step(par, ks):
    ops = []
    C = V_CST + 8*par
    for b in range(2):
        ops += dq_ops(V_RAW + 4*par + 2*ks + b, C + 2*b, C + 2*b + 1, C + 4 + b, V_WF + 8*ks + 4*b)
    return ops


def acc(rb, b):
    return V_ACC + 8*rb + 4*b


def main_prologue(a, o):
    if o.prio_m:
        a(f"s_setprio {o.prio_m}")
    a(f"s_lshl_b32 s{S_T0}, s{S_W4}, 4")
    a(f"v_add_u32 v4, s{S_T0}, v2")
    a(f"v_mul_u32_u24 v5, {QS}, v3")
    a("v_lshl_add_u32 v5, v4, 3, v5")
    a("v_lshlrev_b32 v6, 2, v4")
    a(f"s_mul_i32 s{S_T0}, s{S_ROT}, {8*QS}")
    a(f"s_lshl_b32 s{S_T1}, s{S_CG}, 9")
    a(f"s_add_u32 s{S_T0}, s{S_T0}, s{S_T1}")
    a(f"s_add_u32 s{S_T1}, s{S_T0}, {4*QS}")
    a(f"s_mul_i32 s{S_T2}, s{S_ROT}, {SS}")
    a(f"s_lshl_b32 s{S_T3}, s{S_CG}, 8")
    a(f"s_add_u32 s{S_T2}, s{S_T2}, s{S_T3}")
    a("s_waitcnt lgkmcnt(0)")
    stamp(a, o, "K", 'c')
    a(f"buffer_load_dword v8, v6, s[{SRD_S}:{SRD_S+3}], s{S_T2} offen")
    a(f"buffer_load_dword v9, v6, s[{SRD_Z}:{SRD_Z+3}], s{S_T2} offen")
    a(f"buffer_load_dwordx2 v[{V_RAW}:{V_RAW+1}], v5, s[{SRD_Q}:{SRD_Q+3}], s{S_T0} offen")
    a(f"buffer_load_dwordx2 v[{V_RAW+2}:{V_RAW+3}], v5, s[{SRD_Q}:{SRD_Q+3}], s{S_T1} offen")
    a(f"s_mov_b32 s{S_MASK0}, 0x000f000f")
    a(f"s_mov_b32 s{S_MASK1}, 0x00f000f0")
    a(f"s_mov_b32 s22, {2048*SS}")
    a("s_mov_b32 s23, 0x00020000")
    a("v_lshrrev_b32 v7, 1, v2")
    a("v_xor_b32 v7, v7, v3")
    a("v_lshlrev_b32 v7, 4, v7")
    a("v_lshl_add_u32 v7, v2, 7, v7")
    a(f"v_add_u32 v{V_XA}, {L_X}, v7")
    a(f"v_xor_b32 v{V_XA+1}, 64, v{V_XA}")
    if o.U > 2:
        a(f"v_add_u32 v{V_XA+2}, {2*XSLOT}, v{V_XA}")
        a(f"v_add_u32 v{V_XA+3}, {2*XSLOT}, v{V_XA+1}")
    else:
        a(f"s_mov_b32 s{S_DX}, {2*XSLOT}")
    a("v_lshlrev_b32 v7, 9, v3")
    a(f"v_lshl_add_u32 v{V_WA}, v4, 3, v7")
    a(f"v_lshlrev_b32 v{V_PA}, 4, v4")
    a(f"v_add_u32 v{V_PA}, {L_C}, v{V_PA}")
    a(f"v_lshlrev_b32 v{V_QA}, 3, v4")
    a(f"v_add_u32 v{V_QA}, {L_C+1024}, v{V_QA}")
    a(f"v_mul_u32_u24 v7, {SS}, v2")
    a("v_lshl_add_u32 v7, v3, 4, v7")
    a(f"s_lshl_b32 s{S_T0}, s{S_W4}, 6")
    a(f"s_add_u32 s{S_T0}, s{S_T0}, s{S_T3}")
    a(f"v_add_u32 v{V_O}, s{S_T0}, v7")
    a(f"s_mul_i32 s{S_ROW}, s{S_RB0}, {16*SS}")
    a(f"s_mov_b32 s{S_CNT}, {16//o.U}")
    for r in range(120):
        a(f"v_mov_b32 v{V_ACC+r}, 0")
    a("s_waitcnt vmcnt(2)")
    C = V_CST
    a("v_lshlrev_b32 v4, 16, v8")
    a("v_and_b32 v5, 0xffff0000, v8")
    a("v_lshlrev_b32 v6, 16, v9")
    a("v_and_b32 v7, 0xffff0000, v9")
    a(f"v_mul_f32 v{C}, 0x4b800000, v4")
    a(f"v_mul_f32 v{C+1}, 0x49800000, v4")
    a(f"v_mul_f32 v{C+2}, 0x4b800000, v5")
    a(f"v_mul_f32 v{C+3}, 0x49800000, v5")
    a(f"v_mul_f32_e64 v{C+4}, -v6, v4")
    a(f"v_mul_f32_e64 v{C+5}, -v7, v5")
    a("s_waitcnt vmcnt(0)")
    stamp(a, o, "W0", 'c')
    for op in dq_step(0, 0):
        a(op)
    stamp(a, o, "B0a", 'c')
    a("s_barrier")
    stamp(a, o, "B0p", 'c')
    a(f"s_cmp_ge_u32 s{S_RP}, 7")
    a("s_cbranch_scc1 L_main15")


def main_variant(a, o, R):
    P = o.P15 if R == 15 else o.P14
    LA = o.LA15 if R == 15 else o.LA14
    G = o.G15 if R == 15 else o.G14
    U = o.U
    NF = U * 2 * R
    NG = 2 * NF
    assert NF % P == 0 and NF % G == 0 and LA <= P and G <= LA, (NF, P, G, LA)

    def xread(F):
        s, rem = divmod(F, 2*R)
        ks, rb = divmod(rem, R)
        if U == 2:
            va = V_XA + ks
        else:
            va = V_XA + 2*((s % 4)//2) + ks
        return f"ds_read_b128 {vr(V_XP + 4*(F % P))}, v{va} offset:{(s % 2)*XSLOT + rb*2048}"

    nv = [[] for _ in range(NG)]
    va = [[] for _ in range(NG)]
    for F in range(LA, LA + NF):
        g = 2*(F - LA) + 1
        if F % (2*R) == 0:
            nv[g-1].append(("s_barrier", 'b', None))
        nv[g].append((xread(F), 'r', ('x', F % NF)))
    waitgaps = {}
    for F in range(0, NF, G):
        waitgaps[(2*F - o.wpos) % NG] = F
    def free_gap(lo, hi, step=1):
        best = None
        for g in range(lo, hi):
            load = len(nv[g]) + len(va[g]) + (1 if g in waitgaps else 0)
            if best is None or load < best[0]:
                best = (load, g)
        return best[1]
    for s in range(U):
        b0 = s * 4 * R
        par = (s + 1) % 2
        if U == 2:
            o0 = 8 if s == 0 else 0
        else:
            o0 = 8 * ((s + 1) % 4)
        g = free_gap(b0 + 2, b0 + 8)
        nv[g].append((f"ds_read2st64_b64 {vr(V_RAW + 4*par)}, v{V_WA} offset0:{o0} offset1:{o0+4}", 'r', ('w', s)))
        if U == 2 and s == 0:
            g2 = free_gap(g + 1, g + 12)
            va[g2].append(f"v_xor_b32 v{V_WA}, 0x2000, v{V_WA}")
        g = free_gap(b0 + 2, b0 + 10)
        nv[g].append((f"ds_read_b128 {vr(V_CST + 8*par)}, v{V_PA} offset:{(s+1)*1536}", 'r', ('p', s)))
        if s == U - 1 and U < 16:
            g2 = free_gap(g + 1, g + 16)
            va[g2].append(f"v_add_u32 v{V_PA}, {U*1536}, v{V_PA}")
        g = free_gap(b0 + 2, b0 + 12)
        nv[g].append((f"ds_read_b64 {vr(V_CST + 8*par + 4, 2)}, v{V_QA} offset:{(s+1)*1536}", 'r', ('q', s)))
        if s == U - 1 and U < 16:
            g2 = free_gap(g + 1, g + 16)
            va[g2].append(f"v_add_u32 v{V_QA}, {U*1536}, v{V_QA}")
    if U == 2:
        glo = 2*(3*R - 1 - LA) + 2
        ghi = 2*(4*R - LA) + 1
        g = free_gap(glo, ghi)
        va[g].append(f"v_add_u32 v{V_XA}, s{S_DX}, v{V_XA}")
        glo = 2*(4*R - 1 - LA) + 2
        g = free_gap(glo, NG - 3)
        va[g].append(f"v_add_u32 v{V_XA+1}, s{S_DX}, v{V_XA+1}")
        g = free_gap(g + 1, NG - 1)
        nv[g].append((f"s_sub_u32 s{S_DX}, 0, s{S_DX}", 's', None))
        gl = g
    else:
        gl = NG - 12
    if U < 16:
        g = free_gap(gl + 1, NG) if gl + 1 < NG else NG - 1
        nv[g].append((f"s_sub_u32 s{S_CNT}, s{S_CNT}, 1", 's', None))
        nv[g].append((f"s_cmp_lg_u32 s{S_CNT}, 0", 's', None))
    over = 0
    for s in range(U):
        for ks in range(2):
            b0 = s*4*R + ks*2*R
            ops = dq_step(s % 2, 1) if ks == 0 else dq_step((s + 1) % 2, 0)
            if o.nodq:
                ops = []
            gaps = list(range(b0, b0 + 2*R))
            def load(g):
                return len(nv[g]) + len(va[g]) + (1 if g in waitgaps else 0) + (1 if (g == NG - 1 and U < 16) else 0)
            room = {g: max(0, min(2 - len(va[g]), o.cap - load(g))) for g in gaps}
            tot = sum(room.values())
            extra = len(ops) - tot
            if extra > 0:
                over += extra
                cand = sorted(gaps, key=lambda g: (room[g] + len(va[g]), g))
                cand = [g for g in gaps if room[g] + len(va[g]) < 2]
                step = len(cand) / extra
                for t in range(extra):
                    room[cand[int((t + 0.5) * step)]] += 1
            else:
                surplus = -extra
                while surplus > 0:
                    mx = max(room[g] + load(g) for g in gaps if room[g] > 0)
                    cand = [g for g in gaps if room[g] > 0 and room[g] + load(g) == mx]
                    k = min(surplus, len(cand))
                    step = len(cand) / k
                    for t in range(k):
                        room[cand[int((t + 0.5) * step)]] -= 1
                    surplus -= k
            it = iter(ops)
            for g in gaps:
                for _ in range(room[g]):
                    va[g].append(next(it))
    order = []
    for g in range(NG):
        for t, kind, key in nv[g]:
            if kind == 'r':
                order.append((g, key))
    def wait_count(g, F):
        need = ('x', (F + G - 1) % NF)
        idx = max((t for t, (gg, k) in enumerate(order) if gg <= g), default=-1)
        cnt = 0
        while order[idx % len(order)][1] != need:
            idx -= 1
            cnt += 1
        assert cnt <= 15
        return cnt

    a.label(f"L_main{R}")
    for F in range(LA):
        a(xread(F))
    a(f"s_waitcnt lgkmcnt({LA - G})")
    for _ in range(o.pad):
        a("s_nop 0")
    a.label(f"L_loop{R}")
    for n in range(NG):
        F = n // 2
        s, rem = divmod(F, 2*R)
        ks, rb = divmod(rem, R)
        b = n % 2
        if U == 16 and n % (4*R) == 0:
            stamp(a, o, f"L{s}", 'c')
        a(f"v_mfma_f32_16x16x32_bf16 {vr(acc(rb, b))}, {vr(V_WF + 8*ks + 4*b)}, {vr(V_XP + 4*(F % P))}, {vr(acc(rb, b))}")
        for t, kind, key in nv[n]:
            if o.nord and kind == 'r' and key[0] == 'x':
                continue
            a(t)
        if n in waitgaps and o.wpos > 1:
            a(f"s_waitcnt lgkmcnt({wait_count(n, waitgaps[n])})")
        for t in va[n]:
            a(t)
        if n in waitgaps and o.wpos == 1:
            a(f"s_waitcnt lgkmcnt({wait_count(n, waitgaps[n])})")
    if U < 16:
        a(f"s_cbranch_scc1 L_loop{R}")
    stamp(a, o, "E0", 'c')
    for rb in range(R):
        if rb == R - 2:
            a("s_nop 1")
        for r in range(4):
            a(f"v_cvt_pk_bf16_f32 v{acc(rb,0)+r}, v{acc(rb,0)+r}, v{acc(rb,1)+r}")
        a(f"buffer_store_dwordx4 {vr(acc(rb,0))}, v{V_O}, s[{SRD_O}:{SRD_O+3}], s{S_ROW} offen {o.st_flags}".rstrip())
        if rb < R - 1:
            a(f"s_add_u32 s{S_ROW}, s{S_ROW}, {16*SS}")
    if o.stamps:
        stamp(a, o, "E1", 'c')
        a("s_waitcnt vmcnt(0)")
        stamp(a, o, "E2", 'c')
        write_stamps(a, o)
    a("s_endpgm")
    return over


def helper(a, o):
    V_XO, V_WO, V_CO, V_CP, V_CQ = 10, 11, 12, 13, 14
    V_S, V_Z = 16, 20
    V_T = 24
    V_PO = 32
    V_QO = 48
    a.label("L_helper")
    if o.prio_h:
        a(f"s_setprio {o.prio_h}")
    a(f"s_lshl_b32 s{S_T0}, s{S_W4}, 2")
    a(f"v_add_u32 v4, s{S_T0}, v3")
    a(f"v_add_u32 v5, s{S_ROT}, v4")
    a("v_and_b32 v5, 15, v5")
    a(f"v_mul_u32_u24 v5, {SS}, v5")
    a(f"v_lshl_add_u32 v{V_CO}, v2, 4, v5")
    a(f"s_lshl_b32 s{S_T3}, s{S_CG}, 8")
    a(f"s_and_b32 s{S_T0}, s{S_W4}, 1")
    a(f"s_lshl_b32 s{S_T0}, s{S_T0}, 2")
    a("v_and_b32 v5, 7, v0")
    a("v_xor_b32 v5, v5, v3")
    a(f"v_xor_b32 v5, s{S_T0}, v5")
    a("v_lshlrev_b32 v5, 4, v5")
    a("v_lshrrev_b32 v6, 3, v0")
    a(f"v_lshl_add_u32 v{V_XO}, v6, 11, v5")
    a("s_mov_b32 s6, 0x400000")
    a("s_mov_b32 s7, 0x00020000")
    a(f"s_lshl_b32 s{S_XROW}, s{S_RB0}, 15")
    a(f"s_lshl_b32 s{S_T0}, s{S_W4}, 14")
    a(f"s_add_u32 s{S_XROW}, s{S_XROW}, s{S_T0}")
    a(f"s_lshl_b32 s{S_KOFF}, s{S_ROT}, 7")
    a(f"s_lshl_b32 s{S_T0}, s{S_W4}, 10")
    a(f"s_add_u32 s{S_XL0}, s{S_T0}, {L_X}")
    a(f"s_mov_b32 s{S_XL}, s{S_XL0}")
    a("v_lshrrev_b32 v5, 5, v0")
    a(f"v_mul_u32_u24 v5, {QS}, v5")
    a("v_and_b32 v6, 31, v0")
    a(f"v_lshl_add_u32 v5, v6, 4, v5")
    a(f"s_mul_i32 s{S_T1}, s{S_W4}, {2*QS}")
    a(f"s_lshl_b32 s{S_T2}, s{S_CG}, 9")
    a(f"s_add_u32 s{S_T1}, s{S_T1}, s{S_T2}")
    a(f"v_add_u32 v{V_WO}, s{S_T1}, v5")
    a(f"s_add_u32 s{S_WOFF}, s{S_ROT}, 1")
    a(f"s_and_b32 s{S_WOFF}, s{S_WOFF}, 15")
    a(f"s_mul_i32 s{S_WOFF}, s{S_WOFF}, {8*QS}")
    a(f"s_add_u32 s{S_WL}, s{S_T0}, {L_W + 4096}")
    a(f"s_cmp_ge_u32 s{S_RP}, 7")
    a(f"s_cselect_b32 s{S_HAS8}, 2, 0")
    a(f"s_cmp_lt_u32 s{S_W4}, s{S_HAS8}")
    a(f"s_cselect_b32 s{S_HAS8}, 1, 0")
    a("s_waitcnt lgkmcnt(0)")
    stamp(a, o, "K", 'p')
    a(f"buffer_load_dwordx4 {vr(V_S)}, v{V_CO}, s[{SRD_S}:{SRD_S+3}], s{S_T3} offen")
    a(f"buffer_load_dwordx4 {vr(V_Z)}, v{V_CO}, s[{SRD_Z}:{SRD_Z+3}], s{S_T3} offen")

    uid = [0]
    def issue(dma=True):
        uid[0] += 1
        u = uid[0]
        a(f"s_add_u32 s{S_XCUR}, s{S_XROW}, s{S_KOFF}")
        a(f"s_mov_b32 m0, s{S_XL}")
        a(f"s_add_u32 s{S_KOFF}, s{S_KOFF}, 128")
        for t in range(8):
            if t == 7:
                a(f"s_cmp_eq_u32 s{S_HAS8}, 0")
                a(f"s_cbranch_scc1 L_h8_{u}")
            if dma:
                a(f"buffer_load_dwordx4 v{V_XO}, s[{SRD_X}:{SRD_X+3}], s{S_XCUR} offen lds")
            if t < 7:
                a(f"s_add_u32 m0, m0, 4096")
                a(f"s_add_u32 s{S_XCUR}, s{S_XCUR}, 65536")
        a.label(f"L_h8_{u}")
        a(f"s_mov_b32 m0, s{S_WL}")
        a(f"s_and_b32 s{S_KOFF}, s{S_KOFF}, 2047")
        if dma:
            a(f"buffer_load_dwordx4 v{V_WO}, s[{SRD_Q}:{SRD_Q+3}], s{S_WOFF} offen lds")
        a(f"s_add_u32 s{S_WOFF}, s{S_WOFF}, {8*QS}")
        a(f"s_cmp_eq_u32 s{S_WOFF}, {128*QS}")
        a(f"s_cselect_b32 s{S_WOFF}, 0, s{S_WOFF}")
        a(f"s_add_u32 s{S_WL}, s{S_WL}, 4096")
        a(f"s_and_b32 s{S_WL}, s{S_WL}, 16383")
        a(f"s_add_u32 s{S_XL}, s{S_XL}, {XSLOT}")
        a(f"s_cmp_ge_u32 s{S_XL}, {L_X + 4*XSLOT}")
        a(f"s_cselect_b32 s{S_XL}, s{S_XL0}, s{S_XL}")
    def wait_keep(n):
        uid[0] += 1
        u = uid[0]
        if n == 0:
            a("s_waitcnt vmcnt(0)")
            return
        a(f"s_cmp_eq_u32 s{S_HAS8}, 0")
        a(f"s_cbranch_scc1 L_w8_{u}")
        a(f"s_waitcnt vmcnt({9*n})")
        a(f"s_branch L_w9_{u}")
        a.label(f"L_w8_{u}")
        a(f"s_waitcnt vmcnt({8*n})")
        a.label(f"L_w9_{u}")

    for i in range(o.pre):
        issue()
    a(f"v_mul_u32_u24 v5, 1536, v4")
    a(f"v_lshl_add_u32 v{V_CP}, v2, 6, v5")
    a(f"v_lshl_add_u32 v{V_CQ}, v2, 5, v5")
    wait_keep(o.pre)
    stamp(a, o, "C0", 'p')
    for d in range(4):
        T = V_T
        a(f"v_lshlrev_b32 v{T}, 16, v{V_S+d}")
        a(f"v_and_b32 v{T+1}, 0xffff0000, v{V_S+d}")
        a(f"v_lshlrev_b32 v{T+2}, 16, v{V_Z+d}")
        a(f"v_and_b32 v{T+3}, 0xffff0000, v{V_Z+d}")
        a(f"v_mul_f32 v{V_PO+4*d}, 0x4b800000, v{T}")
        a(f"v_mul_f32 v{V_PO+4*d+1}, 0x49800000, v{T}")
        a(f"v_mul_f32 v{V_PO+4*d+2}, 0x4b800000, v{T+1}")
        a(f"v_mul_f32 v{V_PO+4*d+3}, 0x49800000, v{T+1}")
        a(f"v_mul_f32_e64 v{V_QO+2*d}, -v{T+2}, v{T}")
        a(f"v_mul_f32_e64 v{V_QO+2*d+1}, -v{T+3}, v{T+1}")
        a(f"ds_write_b128 v{V_CP}, {vr(V_PO+4*d)} offset:{L_C + 16*d}")
    a(f"ds_write_b128 v{V_CQ}, {vr(V_QO)} offset:{L_C + 1024}")
    a(f"ds_write_b128 v{V_CQ}, {vr(V_QO+4)} offset:{L_C + 1024 + 16}")
    stamp(a, o, "C1", 'p')
    wait_keep(o.pre - 1)
    a("s_waitcnt lgkmcnt(0)")
    stamp(a, o, "B0a", 'p')
    a("s_barrier")
    stamp(a, o, "B0p", 'p')
    b = 0
    nxt = o.pre
    while nxt > b + 2:
        if nxt <= 3:
            issue(not o.nodma)
            nxt += 1
        wait_keep(nxt - 1 - (b + 1))
        stamp(a, o, f"B{b+1}a", 'p')
        a("s_barrier")
        b += 1
    n_it = 14 - b
    a(f"s_mov_b32 s{S_CNT}, {n_it}")
    a.label("L_hloop")
    issue(not o.nodma)
    wait_keep(1)
    a("s_barrier")
    a(f"s_sub_u32 s{S_CNT}, s{S_CNT}, 1")
    a(f"s_cmp_lg_u32 s{S_CNT}, 0")
    a("s_cbranch_scc1 L_hloop")
    a("s_waitcnt vmcnt(0)")
    a("s_barrier")
    a("s_barrier")
    stamp(a, o, "X", 'p')
    if o.stamps:
        write_stamps(a, o, 'p')
    a.label("L_end")
    a("s_endpgm")


def regs_of(tok):
    out = set()
    for m in re.finditer(r"\bv\[(\d+):(\d+)\]|\bv(\d+)\b", tok):
        if m.group(3) is not None:
            out.add(int(m.group(3)))
        else:
            out.update(range(int(m.group(1)), int(m.group(2)) + 1))
    return out


def verify_main(lines, R, o):
    txt = [l.strip() for l in lines]
    i0 = txt.index(f"L_main{R}:")
    il = txt.index(f"L_loop{R}:")
    ie = next(i for i in range(il, len(txt)) if txt[i].startswith("s_endpgm"))
    if o.U < 16:
        ib = txt.index(f"s_cbranch_scc1 L_loop{R}")
        seq = txt[i0+1:il] + txt[il+1:ib] * 3 + txt[ib+1:ie]
    else:
        seq = txt[i0+1:il] + txt[il+1:ie]
    pend = []
    lastv = {}
    lastm = {}
    for n, ins in enumerate(seq):
        op = ins.split()[0]
        if op == "s_waitcnt":
            m = re.search(r"lgkmcnt\((\d+)\)", ins)
            if m:
                k = int(m.group(1))
                while len(pend) > k:
                    pend.pop(0)
            continue
        rs = regs_of(ins)
        for p in pend:
            assert not (p & rs), f"pending LDS read hazard at {n}: {ins}"
        args = ins[len(op):].split(",")
        if op.startswith("ds_read"):
            pend.append(regs_of(args[0]))
            assert len(pend) <= 15
        elif op.startswith("v_mfma"):
            for r in regs_of(",".join(args[1:])):
                assert n - lastv.get(r, -99) > 2, f"VALU->MFMA hazard at {n}: {ins}"
            for r in regs_of(args[0]):
                lastm[r] = n
        elif op.startswith("v_") or op.startswith("buffer"):
            for r in rs:
                assert n - lastm.get(r, -99) > 8, f"MFMA->VALU hazard at {n}: {ins}"
            if op.startswith("v_"):
                for r in regs_of(args[0]):
                    lastv[r] = n


def gen(o):
    a = Asm()
    common_prologue(a, o)
    main_prologue(a, o)
    ov14 = main_variant(a, o, 14)
    a.lines.append(".p2align 6")
    ov15 = main_variant(a, o, 15)
    a.lines.append(".p2align 6")
    helper(a, o)
    if not (o.nord or o.nodq):
        verify_main(a.lines, 14, o)
        verify_main(a.lines, 15, o)
    body = a.text()
    out = HEADER
    out += "; Override launch geometry by editing the next line (default: block=256,\n"
    out += "; grid=ceil(out_elems/256), lds=0). Harness parses it; keep it on one line.\n"
    out += f"; @launch grid=(256,1,1) block=(512,1,1) lds={LDS_BYTES}\n"
    out += f'.amdgcn_target "amdgcn-amd-amdhsa--gfx950"\n.text\n.globl {NAME}_kernel\n.p2align 8\n.type {NAME}_kernel,@function\n{NAME}_kernel:\n'
    out += body
    out += f""".section .rodata,"a"
.p2align 6
.amdhsa_kernel {NAME}_kernel
  .amdhsa_next_free_vgpr 256
  .amdhsa_next_free_sgpr 102
  .amdhsa_accum_offset 256
  .amdhsa_group_segment_fixed_size 0
  .amdhsa_kernarg_size 64
  .amdhsa_user_sgpr_count 2
  .amdhsa_user_sgpr_kernarg_segment_ptr 1
  .amdhsa_system_sgpr_workgroup_id_x 1
  .amdhsa_float_denorm_mode_32 3
  .amdhsa_float_denorm_mode_16_64 3
.end_amdhsa_kernel
"""
    return out, (ov14, ov15)


if __name__ == "__main__":
    o = Opt()
    outp = sys.argv[1]
    for kv in sys.argv[2:]:
        k, v = kv.split("=", 1)
        cur = getattr(o, k)
        if isinstance(cur, bool):
            v = v not in ("0", "False", "false")
        elif isinstance(cur, int):
            v = int(v)
        setattr(o, k, v)
    s, ov = gen(o)
    open(outp, "w").write(s)
    print("written", outp, "overflow", ov, "lines", s.count("\n"))
```

```python
import sys, re

NAME = "standalone__weight_only_int_gptq__prompt"
HEADER = open("cdna_kernels/%s.s.ref" % NAME).read().split("; Override launch")[0]

XS = 2048
QS = 14336
SS = 7168
L_W = 0
L_C = 16384
L_X = 40960
XSLOT = 30720
LDS_BYTES = 163840


class Opt:
    U = 2
    P15 = 10
    P14 = 8
    LA15 = 10
    LA14 = 8
    G15 = 3
    G14 = 4
    cap = 2
    wpos = 1
    st_flags = "sc0 sc1"
    prio_m = 3
    prio_h = 0
    stamps = False
    rotmul = 4
    rotmask = 15
    pre = 2
    mainhi = False
    nodq = False
    nodma = False
    nord = False
    dbg = False
    pad = 0
    cst = "K,W0,B0a,B0p,L1,L2,E0,E1,E2"
    pst = "K,C0,C1,B0a,B0p,B1a,B2a,B3a,X"


class Asm:
    def __init__(self):
        self.lines = []
    def __call__(self, s):
        self.lines.append("    " + s)
    def label(self, s):
        self.lines.append(s + ":")
    def c(self, s):
        self.lines.append("    ; " + s)
    def text(self):
        return "\n".join(self.lines) + "\n"


def vr(b, n=4):
    return f"v[{b}:{b+n-1}]"


SRD_X, SRD_Q, SRD_S, SRD_Z, SRD_O = 4, 8, 12, 16, 20
S_WAVE = 24
S_W4 = 25
S_CG, S_RP, S_RB0, S_ROT = 26, 27, 28, 29
S_T0, S_T1, S_T2, S_T3 = 30, 31, 32, 33
S_MASK0, S_MASK1 = 34, 35
S_CNT = 36
S_DX = 37
S_ROW = 38
S_XROW, S_KOFF, S_XL, S_WOFF, S_WL, S_HAS8, S_XCUR, S_XL0, S_WL0 = 40, 41, 42, 43, 44, 45, 46, 47, 48
S_STAMP = 72


def stamp(a, o, name, role):
    lst = (o.cst if role == 'c' else o.pst).split(",")
    if o.stamps and name in lst:
        idx = 1 + lst.index(name)
        a(f"s_memtime s[{S_STAMP+2*idx}:{S_STAMP+2*idx+1}]")


def write_stamps(a, o, role='c'):
    n = 12
    a(f"s_memrealtime s[{S_STAMP+22}:{S_STAMP+23}]")
    a("s_waitcnt lgkmcnt(0)")
    if o.dbg:
        a(f"s_cmp_lg_u32 s{S_W4}, 0")
        a("s_cbranch_scc1 L_end")
        for _ in range(8):
            a("s_sleep 127")
        a("s_mov_b32 s4, s100")
        a("s_mov_b32 s5, s101")
        a("s_mov_b32 s6, 256")
        a("s_mov_b32 s7, 0x00020000")
        a("s_mov_b64 exec, 1")
        a("v_mov_b32 v1, 0")
        def put(idx, sreg):
            a(f"v_mov_b32 v2, s{sreg}")
            a(f"buffer_atomic_umax v2, v1, s[4:7], 0 offen offset:{4*idx}")
            a("s_nop 1")
        a(f"s_and_b32 s30, s{S_STAMP+20}, 0xffffff")
        a(f"s_sub_u32 s31, 0x1000000, s30")
        put(0, 31)
        put(1, 30)
        a(f"s_and_b32 s30, s{S_STAMP+22}, 0xffffff")
        put(2, 30)
        lst = range(1, 10) if role == 'c' else range(1, 5)
        for t in lst:
            a(f"s_sub_u32 s30, s{S_STAMP+2*t}, s{S_STAMP}")
            put(2 + t if role == 'c' else 11 + t, 30)
        a("s_waitcnt vmcnt(0)")
        return
    a("s_mov_b32 s4, s100")
    a("s_mov_b32 s5, s101")
    a("s_mov_b32 s6, 0x1000000")
    a("s_mov_b32 s7, 0x00020000")
    a("s_lshl_b32 s30, s2, 3")
    if o.mainhi:
        a(f"s_xor_b32 s31, s{S_WAVE}, 4")
        a("s_add_u32 s30, s30, s31")
    else:
        a(f"s_add_u32 s30, s30, s{S_WAVE}")
    a("s_lshl_b32 s30, s30, 7")
    a("v_mov_b32 v1, 0")
    for t in range(n):
        a(f"v_mov_b32 v2, s{S_STAMP+2*t}")
        a(f"v_mov_b32 v3, s{S_STAMP+2*t+1}")
        a(f"buffer_store_dwordx2 v[2:3], v1, s[4:7], s30 offen offset:{8*t}")
        a("s_nop 1")
    a("s_waitcnt vmcnt(0)")


def common_prologue(a, o):
    a("s_load_dwordx2 s[4:5], s[0:1], 0")
    a("s_load_dwordx2 s[8:9], s[0:1], 8")
    a("s_load_dwordx2 s[12:13], s[0:1], 16")
    a("s_load_dwordx2 s[16:17], s[0:1], 24")
    a("s_load_dwordx2 s[20:21], s[0:1], 40")
    if o.stamps:
        a(f"s_load_dwordx2 s[100:101], s[0:1], {48 if o.dbg else 56}")
        a(f"s_memtime s[{S_STAMP}:{S_STAMP+1}]")
        a(f"s_memrealtime s[{S_STAMP+20}:{S_STAMP+21}]")
    a("v_lshrrev_b32 v1, 6, v0")
    a("v_and_b32 v0, 63, v0")
    a(f"s_and_b32 s{S_T0}, s2, 7")
    a(f"s_lshr_b32 s{S_T1}, s2, 3")
    a(f"v_readfirstlane_b32 s{S_WAVE}, v1")
    a(f"s_and_b32 s{S_T2}, s{S_T0}, 1")
    a(f"s_add_u32 s{S_T2}, s{S_T2}, 31")
    a(f"s_cmp_ge_u32 s{S_T1}, s{S_T2}")
    a("s_cbranch_scc1 L_end")
    a(f"s_mul_i32 s{S_T0}, s{S_T0}, 63")
    a(f"s_lshr_b32 s{S_T0}, s{S_T0}, 1")
    a(f"s_add_u32 s{S_T0}, s{S_T0}, s{S_T1}")
    a(f"s_mul_i32 s{S_RP}, s{S_T0}, 2341")
    a(f"s_lshr_b32 s{S_RP}, s{S_RP}, 16")
    a(f"s_mul_i32 s{S_T1}, s{S_RP}, 28")
    a(f"s_sub_u32 s{S_CG}, s{S_T0}, s{S_T1}")
    a(f"s_mul_i32 s{S_RB0}, s{S_RP}, 14")
    a(f"s_lshr_b32 s{S_T1}, s{S_RP}, 3")
    a(f"s_add_u32 s{S_RB0}, s{S_RB0}, s{S_T1}")
    a(f"s_mul_i32 s{S_ROT}, s{S_CG}, {o.rotmul}")
    a(f"s_and_b32 s{S_ROT}, s{S_ROT}, {o.rotmask}")
    a(f"s_and_b32 s{S_W4}, s{S_WAVE}, 3")
    a(f"s_mov_b32 s10, {128*QS}")
    a("s_mov_b32 s11, 0x00020000")
    a(f"s_mov_b32 s14, {16*SS}")
    a("s_mov_b32 s15, 0x00020000")
    a(f"s_mov_b32 s18, {16*SS}")
    a("s_mov_b32 s19, 0x00020000")
    a("v_and_b32 v2, 15, v0")
    a("v_lshrrev_b32 v3, 4, v0")
    a(f"s_cmp_ge_u32 s{S_WAVE}, 4")
    a("s_cbranch_scc0 L_helper" if o.mainhi else "s_cbranch_scc1 L_helper")


V_XA = 10
V_WA, V_PA, V_QA, V_O = 14, 15, 16, 17
V_RAW = 20
V_CST = 28
V_TMP = 44
V_WF = 60
V_XP = 76
V_ACC = 136


def dq_ops(raw, c1, c2, c0, dst):
    A = V_TMP
    F = V_TMP + 5
    ops = [f"v_and_b32 v{A}, s{S_MASK0}, v{raw}",
           f"v_lshrrev_b32 v{A+4}, 8, v{raw}",
           f"v_and_b32 v{A+1}, s{S_MASK1}, v{raw}",
           f"v_and_b32 v{A+2}, s{S_MASK0}, v{A+4}",
           f"v_and_b32 v{A+3}, s{S_MASK1}, v{A+4}"]
    for hi in range(2):
        for t in range(4):
            c = c1 if t % 2 == 0 else c2
            ops.append(f"v_fma_mix_f32 v{F+4*hi+t}, v{A+t}, v{c}, v{c0} op_sel:[{hi},0,0] op_sel_hi:[1,0,0]")
    for t in range(4):
        ops.append(f"v_cvt_pk_bf16_f32 v{dst+t}, v{F+2*t}, v{F+2*t+1}")
    return ops


def dq_step(par, ks):
    ops = []
    C = V_CST + 8*par
    for b in range(2):
        ops += dq_ops(V_RAW + 4*par + 2*ks + b, C + 2*b, C + 2*b + 1, C + 4 + b, V_WF + 8*ks + 4*b)
    return ops


def acc(rb, b):
    return V_ACC + 8*rb + 4*b


def main_prologue(a, o):
    if o.prio_m:
        a(f"s_setprio {o.prio_m}")
    a(f"s_lshl_b32 s{S_T0}, s{S_W4}, 4")
    a(f"v_add_u32 v4, s{S_T0}, v2")
    a(f"v_mul_u32_u24 v5, {QS}, v3")
    a("v_lshl_add_u32 v5, v4, 3, v5")
    a("v_lshlrev_b32 v6, 2, v4")
    a(f"s_mul_i32 s{S_T0}, s{S_ROT}, {8*QS}")
    a(f"s_lshl_b32 s{S_T1}, s{S_CG}, 9")
    a(f"s_add_u32 s{S_T0}, s{S_T0}, s{S_T1}")
    a(f"s_add_u32 s{S_T1}, s{S_T0}, {4*QS}")
    a(f"s_mul_i32 s{S_T2}, s{S_ROT}, {SS}")
    a(f"s_lshl_b32 s{S_T3}, s{S_CG}, 8")
    a(f"s_add_u32 s{S_T2}, s{S_T2}, s{S_T3}")
    a("s_waitcnt lgkmcnt(0)")
    stamp(a, o, "K", 'c')
    a(f"buffer_load_dword v8, v6, s[{SRD_S}:{SRD_S+3}], s{S_T2} offen")
    a(f"buffer_load_dword v9, v6, s[{SRD_Z}:{SRD_Z+3}], s{S_T2} offen")
    a(f"buffer_load_dwordx2 v[{V_RAW}:{V_RAW+1}], v5, s[{SRD_Q}:{SRD_Q+3}], s{S_T0} offen")
    a(f"buffer_load_dwordx2 v[{V_RAW+2}:{V_RAW+3}], v5, s[{SRD_Q}:{SRD_Q+3}], s{S_T1} offen")
    a(f"s_mov_b32 s{S_MASK0}, 0x000f000f")
    a(f"s_mov_b32 s{S_MASK1}, 0x00f000f0")
    a(f"s_mov_b32 s22, {2048*SS}")
    a("s_mov_b32 s23, 0x00020000")
    a("v_lshrrev_b32 v7, 1, v2")
    a("v_xor_b32 v7, v7, v3")
    a("v_lshlrev_b32 v7, 4, v7")
    a("v_lshl_add_u32 v7, v2, 7, v7")
    a(f"v_add_u32 v{V_XA}, {L_X}, v7")
    a(f"v_xor_b32 v{V_XA+1}, 64, v{V_XA}")
    if o.U > 2:
        a(f"v_add_u32 v{V_XA+2}, {2*XSLOT}, v{V_XA}")
        a(f"v_add_u32 v{V_XA+3}, {2*XSLOT}, v{V_XA+1}")
    else:
        a(f"s_mov_b32 s{S_DX}, {2*XSLOT}")
    a("v_lshlrev_b32 v7, 9, v3")
    a(f"v_lshl_add_u32 v{V_WA}, v4, 3, v7")
    a(f"v_lshlrev_b32 v{V_PA}, 4, v4")
    a(f"v_add_u32 v{V_PA}, {L_C}, v{V_PA}")
    a(f"v_lshlrev_b32 v{V_QA}, 3, v4")
    a(f"v_add_u32 v{V_QA}, {L_C+1024}, v{V_QA}")
    a(f"v_mul_u32_u24 v7, {SS}, v2")
    a("v_lshl_add_u32 v7, v3, 4, v7")
    a(f"s_lshl_b32 s{S_T0}, s{S_W4}, 6")
    a(f"s_add_u32 s{S_T0}, s{S_T0}, s{S_T3}")
    a(f"v_add_u32 v{V_O}, s{S_T0}, v7")
    a(f"s_mul_i32 s{S_ROW}, s{S_RB0}, {16*SS}")
    a(f"s_mov_b32 s{S_CNT}, {16//o.U}")
    for r in range(120):
        a(f"v_mov_b32 v{V_ACC+r}, 0")
    a("s_waitcnt vmcnt(2)")
    C = V_CST
    a("v_lshlrev_b32 v4, 16, v8")
    a("v_and_b32 v5, 0xffff0000, v8")
    a("v_lshlrev_b32 v6, 16, v9")
    a("v_and_b32 v7, 0xffff0000, v9")
    a(f"v_mul_f32 v{C}, 0x4b800000, v4")
    a(f"v_mul_f32 v{C+1}, 0x49800000, v4")
    a(f"v_mul_f32 v{C+2}, 0x4b800000, v5")
    a(f"v_mul_f32 v{C+3}, 0x49800000, v5")
    a(f"v_mul_f32_e64 v{C+4}, -v6, v4")
    a(f"v_mul_f32_e64 v{C+5}, -v7, v5")
    a("s_waitcnt vmcnt(0)")
    stamp(a, o, "W0", 'c')
    for op in dq_step(0, 0):
        a(op)
    stamp(a, o, "B0a", 'c')
    a("s_barrier")
    stamp(a, o, "B0p", 'c')
    a(f"s_cmp_ge_u32 s{S_RP}, 7")
    a("s_cbranch_scc1 L_main15")


def main_variant(a, o, R):
    P = o.P15 if R == 15 else o.P14
    LA = o.LA15 if R == 15 else o.LA14
    G = o.G15 if R == 15 else o.G14
    U = o.U
    NF = U * 2 * R
    NG = 2 * NF
    assert NF % P == 0 and NF % G == 0 and LA <= P and G <= LA, (NF, P, G, LA)

    def xread(F):
        s, rem = divmod(F, 2*R)
        ks, rb = divmod(rem, R)
        if U == 2:
            va = V_XA + ks
        else:
            va = V_XA + 2*((s % 4)//2) + ks
        return f"ds_read_b128 {vr(V_XP + 4*(F % P))}, v{va} offset:{(s % 2)*XSLOT + rb*2048}"

    nv = [[] for _ in range(NG)]
    va = [[] for _ in range(NG)]
    for F in range(LA, LA + NF):
        g = 2*(F - LA) + 1
        if F % (2*R) == 0:
            nv[g-1].append(("s_barrier", 'b', None))
        nv[g].append((xread(F), 'r', ('x', F % NF)))
    waitgaps = {}
    for F in range(0, NF, G):
        waitgaps[(2*F - o.wpos) % NG] = F
    def free_gap(lo, hi, step=1):
        best = None
        for g in range(lo, hi):
            load = len(nv[g]) + len(va[g]) + (1 if g in waitgaps else 0)
            if best is None or load < best[0]:
                best = (load, g)
        return best[1]
    for s in range(U):
        b0 = s * 4 * R
        par = (s + 1) % 2
        if U == 2:
            o0 = 8 if s == 0 else 0
        else:
            o0 = 8 * ((s + 1) % 4)
        g = free_gap(b0 + 2, b0 + 8)
        nv[g].append((f"ds_read2st64_b64 {vr(V_RAW + 4*par)}, v{V_WA} offset0:{o0} offset1:{o0+4}", 'r', ('w', s)))
        if U == 2 and s == 0:
            g2 = free_gap(g + 1, g + 12)
            va[g2].append(f"v_xor_b32 v{V_WA}, 0x2000, v{V_WA}")
        g = free_gap(b0 + 2, b0 + 10)
        nv[g].append((f"ds_read_b128 {vr(V_CST + 8*par)}, v{V_PA} offset:{(s+1)*1536}", 'r', ('p', s)))
        if s == U - 1 and U < 16:
            g2 = free_gap(g + 1, g + 16)
            va[g2].append(f"v_add_u32 v{V_PA}, {U*1536}, v{V_PA}")
        g = free_gap(b0 + 2, b0 + 12)
        nv[g].append((f"ds_read_b64 {vr(V_CST + 8*par + 4, 2)}, v{V_QA} offset:{(s+1)*1536}", 'r', ('q', s)))
        if s == U - 1 and U < 16:
            g2 = free_gap(g + 1, g + 16)
            va[g2].append(f"v_add_u32 v{V_QA}, {U*1536}, v{V_QA}")
    if U == 2:
        glo = 2*(3*R - 1 - LA) + 2
        ghi = 2*(4*R - LA) + 1
        g = free_gap(glo, ghi)
        va[g].append(f"v_add_u32 v{V_XA}, s{S_DX}, v{V_XA}")
        glo = 2*(4*R - 1 - LA) + 2
        g = free_gap(glo, NG - 3)
        va[g].append(f"v_add_u32 v{V_XA+1}, s{S_DX}, v{V_XA+1}")
        g = free_gap(g + 1, NG - 1)
        nv[g].append((f"s_sub_u32 s{S_DX}, 0, s{S_DX}", 's', None))
        gl = g
    else:
        gl = NG - 12
    if U < 16:
        g = free_gap(gl + 1, NG) if gl + 1 < NG else NG - 1
        nv[g].append((f"s_sub_u32 s{S_CNT}, s{S_CNT}, 1", 's', None))
        nv[g].append((f"s_cmp_lg_u32 s{S_CNT}, 0", 's', None))
    over = 0
    for s in range(U):
        for ks in range(2):
            b0 = s*4*R + ks*2*R
            ops = dq_step(s % 2, 1) if ks == 0 else dq_step((s + 1) % 2, 0)
            if o.nodq:
                ops = []
            gaps = list(range(b0, b0 + 2*R))
            def load(g):
                return len(nv[g]) + len(va[g]) + (1 if g in waitgaps else 0) + (1 if (g == NG - 1 and U < 16) else 0)
            room = {g: max(0, min(2 - len(va[g]), o.cap - load(g))) for g in gaps}
            tot = sum(room.values())
            extra = len(ops) - tot
            if extra > 0:
                over += extra
                cand = sorted(gaps, key=lambda g: (room[g] + len(va[g]), g))
                cand = [g for g in gaps if room[g] + len(va[g]) < 2]
                step = len(cand) / extra
                for t in range(extra):
                    room[cand[int((t + 0.5) * step)]] += 1
            else:
                surplus = -extra
                while surplus > 0:
                    mx = max(room[g] + load(g) for g in gaps if room[g] > 0)
                    cand = [g for g in gaps if room[g] > 0 and room[g] + load(g) == mx]
                    k = min(surplus, len(cand))
                    step = len(cand) / k
                    for t in range(k):
                        room[cand[int((t + 0.5) * step)]] -= 1
                    surplus -= k
            it = iter(ops)
            for g in gaps:
                for _ in range(room[g]):
                    va[g].append(next(it))
    order = []
    for g in range(NG):
        for t, kind, key in nv[g]:
            if kind == 'r':
                order.append((g, key))
    def wait_count(g, F):
        need = ('x', (F + G - 1) % NF)
        idx = max((t for t, (gg, k) in enumerate(order) if gg <= g), default=-1)
        cnt = 0
        while order[idx % len(order)][1] != need:
            idx -= 1
            cnt += 1
        assert cnt <= 15
        return cnt

    a.label(f"L_main{R}")
    for F in range(LA):
        a(xread(F))
    a(f"s_waitcnt lgkmcnt({LA - G})")
    for _ in range(o.pad):
        a("s_nop 0")
    a.label(f"L_loop{R}")
    for n in range(NG):
        F = n // 2
        s, rem = divmod(F, 2*R)
        ks, rb = divmod(rem, R)
        b = n % 2
        if U == 16 and n % (4*R) == 0:
            stamp(a, o, f"L{s}", 'c')
        a(f"v_mfma_f32_16x16x32_bf16 {vr(acc(rb, b))}, {vr(V_WF + 8*ks + 4*b)}, {vr(V_XP + 4*(F % P))}, {vr(acc(rb, b))}")
        for t, kind, key in nv[n]:
            if o.nord and kind == 'r' and key[0] == 'x':
                continue
            a(t)
        if n in waitgaps and o.wpos > 1:
            a(f"s_waitcnt lgkmcnt({wait_count(n, waitgaps[n])})")
        for t in va[n]:
            a(t)
        if n in waitgaps and o.wpos == 1:
            a(f"s_waitcnt lgkmcnt({wait_count(n, waitgaps[n])})")
    if U < 16:
        a(f"s_cbranch_scc1 L_loop{R}")
    stamp(a, o, "E0", 'c')
    for rb in range(R):
        if rb == R - 2:
            a("s_nop 1")
        for r in range(4):
            a(f"v_cvt_pk_bf16_f32 v{acc(rb,0)+r}, v{acc(rb,0)+r}, v{acc(rb,1)+r}")
        a(f"buffer_store_dwordx4 {vr(acc(rb,0))}, v{V_O}, s[{SRD_O}:{SRD_O+3}], s{S_ROW} offen {o.st_flags}".rstrip())
        if rb < R - 1:
            a(f"s_add_u32 s{S_ROW}, s{S_ROW}, {16*SS}")
    if o.stamps:
        stamp(a, o, "E1", 'c')
        a("s_waitcnt vmcnt(0)")
        stamp(a, o, "E2", 'c')
        write_stamps(a, o)
    a("s_endpgm")
    return over


def helper(a, o):
    V_XO, V_WO, V_CO, V_CP, V_CQ = 10, 11, 12, 13, 14
    V_S, V_Z = 16, 20
    V_T = 24
    V_PO = 32
    V_QO = 48
    a.label("L_helper")
    if o.prio_h:
        a(f"s_setprio {o.prio_h}")
    a(f"s_lshl_b32 s{S_T0}, s{S_W4}, 2")
    a(f"v_add_u32 v4, s{S_T0}, v3")
    a(f"v_add_u32 v5, s{S_ROT}, v4")
    a("v_and_b32 v5, 15, v5")
    a(f"v_mul_u32_u24 v5, {SS}, v5")
    a(f"v_lshl_add_u32 v{V_CO}, v2, 4, v5")
    a(f"s_lshl_b32 s{S_T3}, s{S_CG}, 8")
    a(f"s_and_b32 s{S_T0}, s{S_W4}, 1")
    a(f"s_lshl_b32 s{S_T0}, s{S_T0}, 2")
    a("v_and_b32 v5, 7, v0")
    a("v_xor_b32 v5, v5, v3")
    a(f"v_xor_b32 v5, s{S_T0}, v5")
    a("v_lshlrev_b32 v5, 4, v5")
    a("v_lshrrev_b32 v6, 3, v0")
    a(f"v_lshl_add_u32 v{V_XO}, v6, 11, v5")
    a("s_mov_b32 s6, 0x400000")
    a("s_mov_b32 s7, 0x00020000")
    a(f"s_lshl_b32 s{S_XROW}, s{S_RB0}, 15")
    a(f"s_lshl_b32 s{S_T0}, s{S_W4}, 14")
    a(f"s_add_u32 s{S_XROW}, s{S_XROW}, s{S_T0}")
    a(f"s_lshl_b32 s{S_KOFF}, s{S_ROT}, 7")
    a(f"s_lshl_b32 s{S_T0}, s{S_W4}, 10")
    a(f"s_add_u32 s{S_XL0}, s{S_T0}, {L_X}")
    a(f"s_mov_b32 s{S_XL}, s{S_XL0}")
    a("v_lshrrev_b32 v5, 5, v0")
    a(f"v_mul_u32_u24 v5, {QS}, v5")
    a("v_and_b32 v6, 31, v0")
    a(f"v_lshl_add_u32 v5, v6, 4, v5")
    a(f"s_mul_i32 s{S_T1}, s{S_W4}, {2*QS}")
    a(f"s_lshl_b32 s{S_T2}, s{S_CG}, 9")
    a(f"s_add_u32 s{S_T1}, s{S_T1}, s{S_T2}")
    a(f"v_add_u32 v{V_WO}, s{S_T1}, v5")
    a(f"s_add_u32 s{S_WOFF}, s{S_ROT}, 1")
    a(f"s_and_b32 s{S_WOFF}, s{S_WOFF}, 15")
    a(f"s_mul_i32 s{S_WOFF}, s{S_WOFF}, {8*QS}")
    a(f"s_add_u32 s{S_WL}, s{S_T0}, {L_W + 4096}")
    a(f"s_cmp_ge_u32 s{S_RP}, 7")
    a(f"s_cselect_b32 s{S_HAS8}, 2, 0")
    a(f"s_cmp_lt_u32 s{S_W4}, s{S_HAS8}")
    a(f"s_cselect_b32 s{S_HAS8}, 1, 0")
    a("s_waitcnt lgkmcnt(0)")
    stamp(a, o, "K", 'p')
    a(f"buffer_load_dwordx4 {vr(V_S)}, v{V_CO}, s[{SRD_S}:{SRD_S+3}], s{S_T3} offen")
    a(f"buffer_load_dwordx4 {vr(V_Z)}, v{V_CO}, s[{SRD_Z}:{SRD_Z+3}], s{S_T3} offen")

    uid = [0]
    def issue(dma=True):
        uid[0] += 1
        u = uid[0]
        a(f"s_add_u32 s{S_XCUR}, s{S_XROW}, s{S_KOFF}")
        a(f"s_mov_b32 m0, s{S_XL}")
        a(f"s_add_u32 s{S_KOFF}, s{S_KOFF}, 128")
        for t in range(8):
            if t == 7:
                a(f"s_cmp_eq_u32 s{S_HAS8}, 0")
                a(f"s_cbranch_scc1 L_h8_{u}")
            if dma:
                a(f"buffer_load_dwordx4 v{V_XO}, s[{SRD_X}:{SRD_X+3}], s{S_XCUR} offen lds")
            if t < 7:
                a(f"s_add_u32 m0, m0, 4096")
                a(f"s_add_u32 s{S_XCUR}, s{S_XCUR}, 65536")
        a.label(f"L_h8_{u}")
        a(f"s_mov_b32 m0, s{S_WL}")
        a(f"s_and_b32 s{S_KOFF}, s{S_KOFF}, 2047")
        if dma:
            a(f"buffer_load_dwordx4 v{V_WO}, s[{SRD_Q}:{SRD_Q+3}], s{S_WOFF} offen lds")
        a(f"s_add_u32 s{S_WOFF}, s{S_WOFF}, {8*QS}")
        a(f"s_cmp_eq_u32 s{S_WOFF}, {128*QS}")
        a(f"s_cselect_b32 s{S_WOFF}, 0, s{S_WOFF}")
        a(f"s_add_u32 s{S_WL}, s{S_WL}, 4096")
        a(f"s_and_b32 s{S_WL}, s{S_WL}, 16383")
        a(f"s_add_u32 s{S_XL}, s{S_XL}, {XSLOT}")
        a(f"s_cmp_ge_u32 s{S_XL}, {L_X + 4*XSLOT}")
        a(f"s_cselect_b32 s{S_XL}, s{S_XL0}, s{S_XL}")
    def wait_keep(n):
        uid[0] += 1
        u = uid[0]
        if n == 0:
            a("s_waitcnt vmcnt(0)")
            return
        a(f"s_cmp_eq_u32 s{S_HAS8}, 0")
        a(f"s_cbranch_scc1 L_w8_{u}")
        a(f"s_waitcnt vmcnt({9*n})")
        a(f"s_branch L_w9_{u}")
        a.label(f"L_w8_{u}")
        a(f"s_waitcnt vmcnt({8*n})")
        a.label(f"L_w9_{u}")

    for i in range(o.pre):
        issue()
    a(f"v_mul_u32_u24 v5, 1536, v4")
    a(f"v_lshl_add_u32 v{V_CP}, v2, 6, v5")
    a(f"v_lshl_add_u32 v{V_CQ}, v2, 5, v5")
    wait_keep(o.pre)
    stamp(a, o, "C0", 'p')
    for d in range(4):
        T = V_T
        a(f"v_lshlrev_b32 v{T}, 16, v{V_S+d}")
        a(f"v_and_b32 v{T+1}, 0xffff0000, v{V_S+d}")
        a(f"v_lshlrev_b32 v{T+2}, 16, v{V_Z+d}")
        a(f"v_and_b32 v{T+3}, 0xffff0000, v{V_Z+d}")
        a(f"v_mul_f32 v{V_PO+4*d}, 0x4b800000, v{T}")
        a(f"v_mul_f32 v{V_PO+4*d+1}, 0x49800000, v{T}")
        a(f"v_mul_f32 v{V_PO+4*d+2}, 0x4b800000, v{T+1}")
        a(f"v_mul_f32 v{V_PO+4*d+3}, 0x49800000, v{T+1}")
        a(f"v_mul_f32_e64 v{V_QO+2*d}, -v{T+2}, v{T}")
        a(f"v_mul_f32_e64 v{V_QO+2*d+1}, -v{T+3}, v{T+1}")
        a(f"ds_write_b128 v{V_CP}, {vr(V_PO+4*d)} offset:{L_C + 16*d}")
    a(f"ds_write_b128 v{V_CQ}, {vr(V_QO)} offset:{L_C + 1024}")
    a(f"ds_write_b128 v{V_CQ}, {vr(V_QO+4)} offset:{L_C + 1024 + 16}")
    stamp(a, o, "C1", 'p')
    wait_keep(o.pre - 1)
    a("s_waitcnt lgkmcnt(0)")
    stamp(a, o, "B0a", 'p')
    a("s_barrier")
    stamp(a, o, "B0p", 'p')
    b = 0
    nxt = o.pre
    while nxt > b + 2:
        if nxt <= 3:
            issue(not o.nodma)
            nxt += 1
        wait_keep(nxt - 1 - (b + 1))
        stamp(a, o, f"B{b+1}a", 'p')
        a("s_barrier")
        b += 1
    n_it = 14 - b
    a(f"s_mov_b32 s{S_CNT}, {n_it}")
    a.label("L_hloop")
    issue(not o.nodma)
    wait_keep(1)
    a("s_barrier")
    a(f"s_sub_u32 s{S_CNT}, s{S_CNT}, 1")
    a(f"s_cmp_lg_u32 s{S_CNT}, 0")
    a("s_cbranch_scc1 L_hloop")
    a("s_waitcnt vmcnt(0)")
    a("s_barrier")
    a("s_barrier")
    stamp(a, o, "X", 'p')
    if o.stamps:
        write_stamps(a, o, 'p')
    a.label("L_end")
    a("s_endpgm")


def regs_of(tok):
    out = set()
    for m in re.finditer(r"\bv\[(\d+):(\d+)\]|\bv(\d+)\b", tok):
        if m.group(3) is not None:
            out.add(int(m.group(3)))
        else:
            out.update(range(int(m.group(1)), int(m.group(2)) + 1))
    return out


def verify_main(lines, R, o):
    txt = [l.strip() for l in lines]
    i0 = txt.index(f"L_main{R}:")
    il = txt.index(f"L_loop{R}:")
    ie = next(i for i in range(il, len(txt)) if txt[i].startswith("s_endpgm"))
    if o.U < 16:
        ib = txt.index(f"s_cbranch_scc1 L_loop{R}")
        seq = txt[i0+1:il] + txt[il+1:ib] * 3 + txt[ib+1:ie]
    else:
        seq = txt[i0+1:il] + txt[il+1:ie]
    pend = []
    lastv = {}
    lastm = {}
    for n, ins in enumerate(seq):
        op = ins.split()[0]
        if op == "s_waitcnt":
            m = re.search(r"lgkmcnt\((\d+)\)", ins)
            if m:
                k = int(m.group(1))
                while len(pend) > k:
                    pend.pop(0)
            continue
        rs = regs_of(ins)
        for p in pend:
            assert not (p & rs), f"pending LDS read hazard at {n}: {ins}"
        args = ins[len(op):].split(",")
        if op.startswith("ds_read"):
            pend.append(regs_of(args[0]))
            assert len(pend) <= 15
        elif op.startswith("v_mfma"):
            for r in regs_of(",".join(args[1:])):
                assert n - lastv.get(r, -99) > 2, f"VALU->MFMA hazard at {n}: {ins}"
            for r in regs_of(args[0]):
                lastm[r] = n
        elif op.startswith("v_") or op.startswith("buffer"):
            for r in rs:
                assert n - lastm.get(r, -99) > 8, f"MFMA->VALU hazard at {n}: {ins}"
            if op.startswith("v_"):
                for r in regs_of(args[0]):
                    lastv[r] = n


def gen(o):
    a = Asm()
    common_prologue(a, o)
    main_prologue(a, o)
    ov14 = main_variant(a, o, 14)
    a.lines.append(".p2align 6")
    ov15 = main_variant(a, o, 15)
    a.lines.append(".p2align 6")
    helper(a, o)
    if not (o.nord or o.nodq):
        verify_main(a.lines, 14, o)
        verify_main(a.lines, 15, o)
    body = a.text()
    out = HEADER
    out += "; Override launch geometry by editing the next line (default: block=256,\n"
    out += "; grid=ceil(out_elems/256), lds=0). Harness parses it; keep it on one line.\n"
    out += f"; @launch grid=(256,1,1) block=(512,1,1) lds={LDS_BYTES}\n"
    out += f'.amdgcn_target "amdgcn-amd-amdhsa--gfx950"\n.text\n.globl {NAME}_kernel\n.p2align 8\n.type {NAME}_kernel,@function\n{NAME}_kernel:\n'
    out += body
    out += f""".section .rodata,"a"
.p2align 6
.amdhsa_kernel {NAME}_kernel
  .amdhsa_next_free_vgpr 256
  .amdhsa_next_free_sgpr 102
  .amdhsa_accum_offset 256
  .amdhsa_group_segment_fixed_size 0
  .amdhsa_kernarg_size 64
  .amdhsa_user_sgpr_count 2
  .amdhsa_user_sgpr_kernarg_segment_ptr 1
  .amdhsa_system_sgpr_workgroup_id_x 1
  .amdhsa_float_denorm_mode_32 3
  .amdhsa_float_denorm_mode_16_64 3
.end_amdhsa_kernel
"""
    return out, (ov14, ov15)


if __name__ == "__main__":
    o = Opt()
    outp = sys.argv[1]
    for kv in sys.argv[2:]:
        k, v = kv.split("=", 1)
        cur = getattr(o, k)
        if isinstance(cur, bool):
            v = v not in ("0", "False", "false")
        elif isinstance(cur, int):
            v = int(v)
        setattr(o, k, v)
    s, ov = gen(o)
    open(outp, "w").write(s)
    print("written", outp, "overflow", ov, "lines", s.count("\n"))
```

```python
import sys, re

NAME = "standalone__weight_only_int_gptq__prompt"
HEADER = open("cdna_kernels/%s.s.ref" % NAME).read().split("; Override launch")[0]

XS = 2048
QS = 14336
SS = 7168
L_W = 0
L_C = 16384
L_X = 40960
XSLOT = 30720
LDS_BYTES = 163840


class Opt:
    U = 2
    P15 = 10
    P14 = 8
    LA15 = 10
    LA14 = 8
    G15 = 3
    G14 = 4
    cap = 2
    wpos = 1
    st_flags = "sc0 sc1"
    prio_m = 3
    prio_h = 0
    stamps = False
    rotmul = 4
    rotmask = 15
    pre = 2
    mainhi = False
    nodq = False
    nodma = False
    nord = False
    dbg = False
    Ra = 14
    Rb = 15
    bal = False
    pad = 0
    cst = "K,W0,B0a,B0p,rB0p,rE0,E0,E1,E2"
    pst = "K,C0,C1,B0a,B0p,B1a,B2a,B3a,X"


class Asm:
    def __init__(self):
        self.lines = []
    def __call__(self, s):
        self.lines.append("    " + s)
    def label(self, s):
        self.lines.append(s + ":")
    def c(self, s):
        self.lines.append("    ; " + s)
    def text(self):
        return "\n".join(self.lines) + "\n"


def vr(b, n=4):
    return f"v[{b}:{b+n-1}]"


SRD_X, SRD_Q, SRD_S, SRD_Z, SRD_O = 4, 8, 12, 16, 20
S_WAVE = 24
S_W4 = 25
S_CG, S_RP, S_RB0, S_ROT = 26, 27, 28, 29
S_T0, S_T1, S_T2, S_T3 = 30, 31, 32, 33
S_MASK0, S_MASK1 = 34, 35
S_CNT = 36
S_DX = 37
S_ROW = 38
S_XROW, S_KOFF, S_XL, S_WOFF, S_WL, S_HAS8, S_XCUR, S_XL0, S_WL0 = 40, 41, 42, 43, 44, 45, 46, 47, 48
S_STAMP = 72


def stamp(a, o, name, role):
    lst = (o.cst if role == 'c' else o.pst).split(",")
    if o.stamps and name in lst:
        idx = 1 + lst.index(name)
        a(f"s_memtime s[{S_STAMP+2*idx}:{S_STAMP+2*idx+1}]")
    if o.stamps and "r" + name in lst:
        idx = 1 + lst.index("r" + name)
        a(f"s_memrealtime s[{S_STAMP+2*idx}:{S_STAMP+2*idx+1}]")


def write_stamps(a, o, role='c'):
    n = 12
    a(f"s_memrealtime s[{S_STAMP+22}:{S_STAMP+23}]")
    a("s_waitcnt lgkmcnt(0)")
    if o.dbg:
        a(f"s_cmp_lg_u32 s{S_W4}, 0")
        a("s_cbranch_scc1 L_end")
        for _ in range(8):
            a("s_sleep 127")
        a("s_mov_b32 s4, s100")
        a("s_mov_b32 s5, s101")
        a("s_mov_b32 s6, 256")
        a("s_mov_b32 s7, 0x00020000")
        a("s_mov_b64 exec, 1")
        a("v_mov_b32 v1, 0")
        def put(idx, sreg):
            a(f"v_mov_b32 v2, s{sreg}")
            a(f"buffer_atomic_umax v2, v1, s[4:7], 0 offen offset:{4*idx}")
            a("s_nop 1")
        a(f"s_and_b32 s30, s{S_STAMP+20}, 0xffffff")
        a(f"s_sub_u32 s31, 0x1000000, s30")
        put(0, 31)
        put(1, 30)
        a(f"s_and_b32 s30, s{S_STAMP+22}, 0xffffff")
        put(2, 30)
        lst = range(1, 10) if role == 'c' else range(1, 5)
        for t in lst:
            a(f"s_sub_u32 s30, s{S_STAMP+2*t}, s{S_STAMP}")
            put(2 + t if role == 'c' else 11 + t, 30)
        a("s_waitcnt vmcnt(0)")
        return
    a("s_mov_b32 s4, s100")
    a("s_mov_b32 s5, s101")
    a("s_mov_b32 s6, 0x1000000")
    a("s_mov_b32 s7, 0x00020000")
    a("s_lshl_b32 s30, s2, 3")
    if o.mainhi:
        a(f"s_xor_b32 s31, s{S_WAVE}, 4")
        a("s_add_u32 s30, s30, s31")
    else:
        a(f"s_add_u32 s30, s30, s{S_WAVE}")
    a("s_lshl_b32 s30, s30, 7")
    a("v_mov_b32 v1, 0")
    for t in range(n):
        a(f"v_mov_b32 v2, s{S_STAMP+2*t}")
        a(f"v_mov_b32 v3, s{S_STAMP+2*t+1}")
        a(f"buffer_store_dwordx2 v[2:3], v1, s[4:7], s30 offen offset:{8*t}")
        a("s_nop 1")
    a("s_waitcnt vmcnt(0)")


def common_prologue(a, o):
    a("s_load_dwordx2 s[4:5], s[0:1], 0")
    a("s_load_dwordx2 s[8:9], s[0:1], 8")
    a("s_load_dwordx2 s[12:13], s[0:1], 16")
    a("s_load_dwordx2 s[16:17], s[0:1], 24")
    a("s_load_dwordx2 s[20:21], s[0:1], 40")
    if o.stamps:
        a(f"s_load_dwordx2 s[100:101], s[0:1], {48 if o.dbg else 56}")
        a(f"s_memtime s[{S_STAMP}:{S_STAMP+1}]")
        a(f"s_memrealtime s[{S_STAMP+20}:{S_STAMP+21}]")
    a("v_lshrrev_b32 v1, 6, v0")
    a("v_and_b32 v0, 63, v0")
    a(f"s_and_b32 s{S_T0}, s2, 7")
    a(f"s_lshr_b32 s{S_T1}, s2, 3")
    a(f"v_readfirstlane_b32 s{S_WAVE}, v1")
    a(f"s_and_b32 s{S_T2}, s{S_T0}, 1")
    a(f"s_add_u32 s{S_T2}, s{S_T2}, 31")
    a(f"s_cmp_ge_u32 s{S_T1}, s{S_T2}")
    a("s_cbranch_scc1 L_end")
    if o.bal:
        a(f"s_mul_i32 s{S_T2}, s{S_T0}, 7")
        a(f"s_add_u32 s{S_T2}, s{S_T2}, 196")
        a(f"s_mul_i32 s{S_T0}, s{S_T0}, 49")
        a(f"s_lshr_b32 s{S_T0}, s{S_T0}, 1")
        a(f"s_sub_u32 s{S_T0}, s{S_T0}, 7")
        a(f"s_cmp_lt_u32 s{S_T1}, 7")
        a(f"s_cselect_b32 s{S_T0}, s{S_T2}, s{S_T0}")
    else:
        a(f"s_mul_i32 s{S_T0}, s{S_T0}, 63")
        a(f"s_lshr_b32 s{S_T0}, s{S_T0}, 1")
    a(f"s_add_u32 s{S_T0}, s{S_T0}, s{S_T1}")
    a(f"s_mul_i32 s{S_RP}, s{S_T0}, 2341")
    a(f"s_lshr_b32 s{S_RP}, s{S_RP}, 16")
    a(f"s_mul_i32 s{S_T1}, s{S_RP}, 28")
    a(f"s_sub_u32 s{S_CG}, s{S_T0}, s{S_T1}")
    a(f"s_mul_i32 s{S_RB0}, s{S_RP}, 14")
    a(f"s_lshr_b32 s{S_T1}, s{S_RP}, 3")
    a(f"s_add_u32 s{S_RB0}, s{S_RB0}, s{S_T1}")
    a(f"s_mul_i32 s{S_ROT}, s{S_CG}, {o.rotmul}")
    a(f"s_and_b32 s{S_ROT}, s{S_ROT}, {o.rotmask}")
    a(f"s_and_b32 s{S_W4}, s{S_WAVE}, 3")
    a(f"s_mov_b32 s10, {128*QS}")
    a("s_mov_b32 s11, 0x00020000")
    a(f"s_mov_b32 s14, {16*SS}")
    a("s_mov_b32 s15, 0x00020000")
    a(f"s_mov_b32 s18, {16*SS}")
    a("s_mov_b32 s19, 0x00020000")
    a("v_and_b32 v2, 15, v0")
    a("v_lshrrev_b32 v3, 4, v0")
    a(f"s_cmp_ge_u32 s{S_WAVE}, 4")
    a("s_cbranch_scc0 L_helper" if o.mainhi else "s_cbranch_scc1 L_helper")


V_XA = 10
V_WA, V_PA, V_QA, V_O = 14, 15, 16, 17
V_RAW = 20
V_CST = 28
V_TMP = 44
V_WF = 60
V_XP = 76
V_ACC = 136


def dq_ops(raw, c1, c2, c0, dst):
    A = V_TMP
    F = V_TMP + 5
    ops = [f"v_and_b32 v{A}, s{S_MASK0}, v{raw}",
           f"v_lshrrev_b32 v{A+4}, 8, v{raw}",
           f"v_and_b32 v{A+1}, s{S_MASK1}, v{raw}",
           f"v_and_b32 v{A+2}, s{S_MASK0}, v{A+4}",
           f"v_and_b32 v{A+3}, s{S_MASK1}, v{A+4}"]
    for hi in range(2):
        for t in range(4):
            c = c1 if t % 2 == 0 else c2
            ops.append(f"v_fma_mix_f32 v{F+4*hi+t}, v{A+t}, v{c}, v{c0} op_sel:[{hi},0,0] op_sel_hi:[1,0,0]")
    for t in range(4):
        ops.append(f"v_cvt_pk_bf16_f32 v{dst+t}, v{F+2*t}, v{F+2*t+1}")
    return ops


def dq_step(par, ks):
    ops = []
    C = V_CST + 8*par
    for b in range(2):
        ops += dq_ops(V_RAW + 4*par + 2*ks + b, C + 2*b, C + 2*b + 1, C + 4 + b, V_WF + 8*ks + 4*b)
    return ops


def acc(rb, b):
    return V_ACC + 8*rb + 4*b


def main_prologue(a, o):
    if o.prio_m:
        a(f"s_setprio {o.prio_m}")
    a(f"s_lshl_b32 s{S_T0}, s{S_W4}, 4")
    a(f"v_add_u32 v4, s{S_T0}, v2")
    a(f"v_mul_u32_u24 v5, {QS}, v3")
    a("v_lshl_add_u32 v5, v4, 3, v5")
    a("v_lshlrev_b32 v6, 2, v4")
    a(f"s_mul_i32 s{S_T0}, s{S_ROT}, {8*QS}")
    a(f"s_lshl_b32 s{S_T1}, s{S_CG}, 9")
    a(f"s_add_u32 s{S_T0}, s{S_T0}, s{S_T1}")
    a(f"s_add_u32 s{S_T1}, s{S_T0}, {4*QS}")
    a(f"s_mul_i32 s{S_T2}, s{S_ROT}, {SS}")
    a(f"s_lshl_b32 s{S_T3}, s{S_CG}, 8")
    a(f"s_add_u32 s{S_T2}, s{S_T2}, s{S_T3}")
    a("s_waitcnt lgkmcnt(0)")
    stamp(a, o, "K", 'c')
    a(f"buffer_load_dword v8, v6, s[{SRD_S}:{SRD_S+3}], s{S_T2} offen")
    a(f"buffer_load_dword v9, v6, s[{SRD_Z}:{SRD_Z+3}], s{S_T2} offen")
    a(f"buffer_load_dwordx2 v[{V_RAW}:{V_RAW+1}], v5, s[{SRD_Q}:{SRD_Q+3}], s{S_T0} offen")
    a(f"buffer_load_dwordx2 v[{V_RAW+2}:{V_RAW+3}], v5, s[{SRD_Q}:{SRD_Q+3}], s{S_T1} offen")
    a(f"s_mov_b32 s{S_MASK0}, 0x000f000f")
    a(f"s_mov_b32 s{S_MASK1}, 0x00f000f0")
    a(f"s_mov_b32 s22, {2048*SS}")
    a("s_mov_b32 s23, 0x00020000")
    a("v_lshrrev_b32 v7, 1, v2")
    a("v_xor_b32 v7, v7, v3")
    a("v_lshlrev_b32 v7, 4, v7")
    a("v_lshl_add_u32 v7, v2, 7, v7")
    a(f"v_add_u32 v{V_XA}, {L_X}, v7")
    a(f"v_xor_b32 v{V_XA+1}, 64, v{V_XA}")
    if o.U > 2:
        a(f"v_add_u32 v{V_XA+2}, {2*XSLOT}, v{V_XA}")
        a(f"v_add_u32 v{V_XA+3}, {2*XSLOT}, v{V_XA+1}")
    else:
        a(f"s_mov_b32 s{S_DX}, {2*XSLOT}")
    a("v_lshlrev_b32 v7, 9, v3")
    a(f"v_lshl_add_u32 v{V_WA}, v4, 3, v7")
    a(f"v_lshlrev_b32 v{V_PA}, 4, v4")
    a(f"v_add_u32 v{V_PA}, {L_C}, v{V_PA}")
    a(f"v_lshlrev_b32 v{V_QA}, 3, v4")
    a(f"v_add_u32 v{V_QA}, {L_C+1024}, v{V_QA}")
    a(f"v_mul_u32_u24 v7, {SS}, v2")
    a("v_lshl_add_u32 v7, v3, 4, v7")
    a(f"s_lshl_b32 s{S_T0}, s{S_W4}, 6")
    a(f"s_add_u32 s{S_T0}, s{S_T0}, s{S_T3}")
    a(f"v_add_u32 v{V_O}, s{S_T0}, v7")
    a(f"s_mul_i32 s{S_ROW}, s{S_RB0}, {16*SS}")
    a(f"s_mov_b32 s{S_CNT}, {16//o.U}")
    for r in range(120):
        a(f"v_mov_b32 v{V_ACC+r}, 0")
    a("s_waitcnt vmcnt(2)")
    C = V_CST
    a("v_lshlrev_b32 v4, 16, v8")
    a("v_and_b32 v5, 0xffff0000, v8")
    a("v_lshlrev_b32 v6, 16, v9")
    a("v_and_b32 v7, 0xffff0000, v9")
    a(f"v_mul_f32 v{C}, 0x4b800000, v4")
    a(f"v_mul_f32 v{C+1}, 0x49800000, v4")
    a(f"v_mul_f32 v{C+2}, 0x4b800000, v5")
    a(f"v_mul_f32 v{C+3}, 0x49800000, v5")
    a(f"v_mul_f32_e64 v{C+4}, -v6, v4")
    a(f"v_mul_f32_e64 v{C+5}, -v7, v5")
    a("s_waitcnt vmcnt(0)")
    stamp(a, o, "W0", 'c')
    for op in dq_step(0, 0):
        a(op)
    stamp(a, o, "B0a", 'c')
    a("s_barrier")
    stamp(a, o, "B0p", 'c')
    a(f"s_cmp_ge_u32 s{S_RP}, 7")
    a("s_cbranch_scc1 L_main15")


def main_variant(a, o, RL):
    P = o.P15 if RL == 15 else o.P14
    LA = o.LA15 if RL == 15 else o.LA14
    G = o.G15 if RL == 15 else o.G14
    R = o.Rb if RL == 15 else o.Ra
    U = o.U
    NF = U * 2 * R
    NG = 2 * NF
    assert NF % P == 0 and NF % G == 0 and LA <= P and G <= LA, (NF, P, G, LA)

    def xread(F):
        s, rem = divmod(F, 2*R)
        ks, rb = divmod(rem, R)
        if U == 2:
            va = V_XA + ks
        else:
            va = V_XA + 2*((s % 4)//2) + ks
        return f"ds_read_b128 {vr(V_XP + 4*(F % P))}, v{va} offset:{(s % 2)*XSLOT + rb*2048}"

    nv = [[] for _ in range(NG)]
    va = [[] for _ in range(NG)]
    for F in range(LA, LA + NF):
        g = 2*(F - LA) + 1
        if F % (2*R) == 0:
            nv[g-1].append(("s_barrier", 'b', None))
        nv[g].append((xread(F), 'r', ('x', F % NF)))
    waitgaps = {}
    for F in range(0, NF, G):
        waitgaps[(2*F - o.wpos) % NG] = F
    def free_gap(lo, hi, step=1):
        best = None
        for g in range(lo, hi):
            load = len(nv[g]) + len(va[g]) + (1 if g in waitgaps else 0)
            if best is None or load < best[0]:
                best = (load, g)
        return best[1]
    for s in range(U):
        b0 = s * 4 * R
        par = (s + 1) % 2
        if U == 2:
            o0 = 8 if s == 0 else 0
        else:
            o0 = 8 * ((s + 1) % 4)
        g = free_gap(b0 + 2, b0 + 8)
        nv[g].append((f"ds_read2st64_b64 {vr(V_RAW + 4*par)}, v{V_WA} offset0:{o0} offset1:{o0+4}", 'r', ('w', s)))
        if U == 2 and s == 0:
            g2 = free_gap(g + 1, g + 12)
            va[g2].append(f"v_xor_b32 v{V_WA}, 0x2000, v{V_WA}")
        g = free_gap(b0 + 2, b0 + 10)
        nv[g].append((f"ds_read_b128 {vr(V_CST + 8*par)}, v{V_PA} offset:{(s+1)*1536}", 'r', ('p', s)))
        if s == U - 1 and U < 16:
            g2 = free_gap(g + 1, g + 16)
            va[g2].append(f"v_add_u32 v{V_PA}, {U*1536}, v{V_PA}")
        g = free_gap(b0 + 2, b0 + 12)
        nv[g].append((f"ds_read_b64 {vr(V_CST + 8*par + 4, 2)}, v{V_QA} offset:{(s+1)*1536}", 'r', ('q', s)))
        if s == U - 1 and U < 16:
            g2 = free_gap(g + 1, g + 16)
            va[g2].append(f"v_add_u32 v{V_QA}, {U*1536}, v{V_QA}")
    if U == 2:
        glo = 2*(3*R - 1 - LA) + 2
        ghi = 2*(4*R - LA) + 1
        g = free_gap(glo, ghi)
        va[g].append(f"v_add_u32 v{V_XA}, s{S_DX}, v{V_XA}")
        glo = 2*(4*R - 1 - LA) + 2
        g = free_gap(glo, NG - 3)
        va[g].append(f"v_add_u32 v{V_XA+1}, s{S_DX}, v{V_XA+1}")
        g = free_gap(g + 1, NG - 1)
        nv[g].append((f"s_sub_u32 s{S_DX}, 0, s{S_DX}", 's', None))
        gl = g
    else:
        gl = NG - 12
    if U < 16:
        g = free_gap(gl + 1, NG) if gl + 1 < NG else NG - 1
        nv[g].append((f"s_sub_u32 s{S_CNT}, s{S_CNT}, 1", 's', None))
        nv[g].append((f"s_cmp_lg_u32 s{S_CNT}, 0", 's', None))
    over = 0
    for s in range(U):
        for ks in range(2):
            b0 = s*4*R + ks*2*R
            ops = dq_step(s % 2, 1) if ks == 0 else dq_step((s + 1) % 2, 0)
            if o.nodq:
                ops = []
            gaps = list(range(b0, b0 + 2*R))
            def load(g):
                return len(nv[g]) + len(va[g]) + (1 if g in waitgaps else 0) + (1 if (g == NG - 1 and U < 16) else 0)
            room = {g: max(0, min(2 - len(va[g]), o.cap - load(g))) for g in gaps}
            tot = sum(room.values())
            extra = len(ops) - tot
            if extra > 0:
                over += extra
                while extra > 0:
                    key = lambda g: (room[g] + len(va[g]), room[g] + load(g)) if o.cap > 2 else (room[g] + load(g), room[g] + len(va[g]))
                    mn = min(key(g) for g in gaps)
                    cand = [g for g in gaps if key(g) == mn]
                    k = min(extra, len(cand))
                    step = len(cand) / k
                    for t in range(k):
                        room[cand[int((t + 0.5) * step)]] += 1
                    extra -= k
            else:
                surplus = -extra
                while surplus > 0:
                    mx = max(room[g] + load(g) for g in gaps if room[g] > 0)
                    cand = [g for g in gaps if room[g] > 0 and room[g] + load(g) == mx]
                    k = min(surplus, len(cand))
                    step = len(cand) / k
                    for t in range(k):
                        room[cand[int((t + 0.5) * step)]] -= 1
                    surplus -= k
            it = iter(ops)
            for g in gaps:
                for _ in range(room[g]):
                    va[g].append(next(it))
    order = []
    for g in range(NG):
        for t, kind, key in nv[g]:
            if kind == 'r':
                order.append((g, key))
    def wait_count(g, F):
        need = ('x', (F + G - 1) % NF)
        idx = max((t for t, (gg, k) in enumerate(order) if gg <= g), default=-1)
        cnt = 0
        while order[idx % len(order)][1] != need:
            idx -= 1
            cnt += 1
        assert cnt <= 15
        return cnt

    a.label(f"L_main{RL}")
    for F in range(LA):
        a(xread(F))
    a(f"s_waitcnt lgkmcnt({LA - G})")
    for _ in range(o.pad):
        a("s_nop 0")
    a.label(f"L_loop{RL}")
    for n in range(NG):
        F = n // 2
        s, rem = divmod(F, 2*R)
        ks, rb = divmod(rem, R)
        b = n % 2
        if U == 16 and n % (4*R) == 0:
            stamp(a, o, f"L{s}", 'c')
        a(f"v_mfma_f32_16x16x32_bf16 {vr(acc(rb, b))}, {vr(V_WF + 8*ks + 4*b)}, {vr(V_XP + 4*(F % P))}, {vr(acc(rb, b))}")
        for t, kind, key in nv[n]:
            if o.nord and kind == 'r' and key[0] == 'x':
                continue
            a(t)
        if n in waitgaps and o.wpos > 1:
            a(f"s_waitcnt lgkmcnt({wait_count(n, waitgaps[n])})")
        for t in va[n]:
            a(t)
        if n in waitgaps and o.wpos == 1:
            a(f"s_waitcnt lgkmcnt({wait_count(n, waitgaps[n])})")
    if U < 16:
        a(f"s_cbranch_scc1 L_loop{RL}")
    stamp(a, o, "E0", 'c')
    for rb in range(R):
        if rb == R - 2:
            a("s_nop 1")
        for r in range(4):
            a(f"v_cvt_pk_bf16_f32 v{acc(rb,0)+r}, v{acc(rb,0)+r}, v{acc(rb,1)+r}")
        a(f"buffer_store_dwordx4 {vr(acc(rb,0))}, v{V_O}, s[{SRD_O}:{SRD_O+3}], s{S_ROW} offen {o.st_flags}".rstrip())
        if rb < R - 1:
            a(f"s_add_u32 s{S_ROW}, s{S_ROW}, {16*SS}")
    if o.stamps:
        stamp(a, o, "E1", 'c')
        a("s_waitcnt vmcnt(0)")
        stamp(a, o, "E2", 'c')
        write_stamps(a, o)
    a("s_endpgm")
    return over


def helper(a, o):
    V_XO, V_WO, V_CO, V_CP, V_CQ = 10, 11, 12, 13, 14
    V_S, V_Z = 16, 20
    V_T = 24
    V_PO = 32
    V_QO = 48
    a.label("L_helper")
    if o.prio_h:
        a(f"s_setprio {o.prio_h}")
    a(f"s_lshl_b32 s{S_T0}, s{S_W4}, 2")
    a(f"v_add_u32 v4, s{S_T0}, v3")
    a(f"v_add_u32 v5, s{S_ROT}, v4")
    a("v_and_b32 v5, 15, v5")
    a(f"v_mul_u32_u24 v5, {SS}, v5")
    a(f"v_lshl_add_u32 v{V_CO}, v2, 4, v5")
    a(f"s_lshl_b32 s{S_T3}, s{S_CG}, 8")
    a(f"s_and_b32 s{S_T0}, s{S_W4}, 1")
    a(f"s_lshl_b32 s{S_T0}, s{S_T0}, 2")
    a("v_and_b32 v5, 7, v0")
    a("v_xor_b32 v5, v5, v3")
    a(f"v_xor_b32 v5, s{S_T0}, v5")
    a("v_lshlrev_b32 v5, 4, v5")
    a("v_lshrrev_b32 v6, 3, v0")
    a(f"v_lshl_add_u32 v{V_XO}, v6, 11, v5")
    a("s_mov_b32 s6, 0x400000")
    a("s_mov_b32 s7, 0x00020000")
    a(f"s_lshl_b32 s{S_XROW}, s{S_RB0}, 15")
    a(f"s_lshl_b32 s{S_T0}, s{S_W4}, 14")
    a(f"s_add_u32 s{S_XROW}, s{S_XROW}, s{S_T0}")
    a(f"s_lshl_b32 s{S_KOFF}, s{S_ROT}, 7")
    a(f"s_lshl_b32 s{S_T0}, s{S_W4}, 10")
    a(f"s_add_u32 s{S_XL0}, s{S_T0}, {L_X}")
    a(f"s_mov_b32 s{S_XL}, s{S_XL0}")
    a("v_lshrrev_b32 v5, 5, v0")
    a(f"v_mul_u32_u24 v5, {QS}, v5")
    a("v_and_b32 v6, 31, v0")
    a(f"v_lshl_add_u32 v5, v6, 4, v5")
    a(f"s_mul_i32 s{S_T1}, s{S_W4}, {2*QS}")
    a(f"s_lshl_b32 s{S_T2}, s{S_CG}, 9")
    a(f"s_add_u32 s{S_T1}, s{S_T1}, s{S_T2}")
    a(f"v_add_u32 v{V_WO}, s{S_T1}, v5")
    a(f"s_add_u32 s{S_WOFF}, s{S_ROT}, 1")
    a(f"s_and_b32 s{S_WOFF}, s{S_WOFF}, 15")
    a(f"s_mul_i32 s{S_WOFF}, s{S_WOFF}, {8*QS}")
    a(f"s_add_u32 s{S_WL}, s{S_T0}, {L_W + 4096}")
    a(f"s_cmp_ge_u32 s{S_RP}, 7")
    a(f"s_cselect_b32 s{S_HAS8}, 2, 0")
    a(f"s_cmp_lt_u32 s{S_W4}, s{S_HAS8}")
    a(f"s_cselect_b32 s{S_HAS8}, 1, 0")
    a("s_waitcnt lgkmcnt(0)")
    stamp(a, o, "K", 'p')
    a(f"buffer_load_dwordx4 {vr(V_S)}, v{V_CO}, s[{SRD_S}:{SRD_S+3}], s{S_T3} offen")
    a(f"buffer_load_dwordx4 {vr(V_Z)}, v{V_CO}, s[{SRD_Z}:{SRD_Z+3}], s{S_T3} offen")

    uid = [0]
    def issue(dma=True):
        uid[0] += 1
        u = uid[0]
        a(f"s_add_u32 s{S_XCUR}, s{S_XROW}, s{S_KOFF}")
        a(f"s_mov_b32 m0, s{S_XL}")
        a(f"s_add_u32 s{S_KOFF}, s{S_KOFF}, 128")
        for t in range(8):
            if t == 7:
                a(f"s_cmp_eq_u32 s{S_HAS8}, 0")
                a(f"s_cbranch_scc1 L_h8_{u}")
            if dma:
                a(f"buffer_load_dwordx4 v{V_XO}, s[{SRD_X}:{SRD_X+3}], s{S_XCUR} offen lds")
            if t < 7:
                a(f"s_add_u32 m0, m0, 4096")
                a(f"s_add_u32 s{S_XCUR}, s{S_XCUR}, 65536")
        a.label(f"L_h8_{u}")
        a(f"s_mov_b32 m0, s{S_WL}")
        a(f"s_and_b32 s{S_KOFF}, s{S_KOFF}, 2047")
        if dma:
            a(f"buffer_load_dwordx4 v{V_WO}, s[{SRD_Q}:{SRD_Q+3}], s{S_WOFF} offen lds")
        a(f"s_add_u32 s{S_WOFF}, s{S_WOFF}, {8*QS}")
        a(f"s_cmp_eq_u32 s{S_WOFF}, {128*QS}")
        a(f"s_cselect_b32 s{S_WOFF}, 0, s{S_WOFF}")
        a(f"s_add_u32 s{S_WL}, s{S_WL}, 4096")
        a(f"s_and_b32 s{S_WL}, s{S_WL}, 16383")
        a(f"s_add_u32 s{S_XL}, s{S_XL}, {XSLOT}")
        a(f"s_cmp_ge_u32 s{S_XL}, {L_X + 4*XSLOT}")
        a(f"s_cselect_b32 s{S_XL}, s{S_XL0}, s{S_XL}")
    def wait_keep(n):
        uid[0] += 1
        u = uid[0]
        if n == 0:
            a("s_waitcnt vmcnt(0)")
            return
        a(f"s_cmp_eq_u32 s{S_HAS8}, 0")
        a(f"s_cbranch_scc1 L_w8_{u}")
        a(f"s_waitcnt vmcnt({9*n})")
        a(f"s_branch L_w9_{u}")
        a.label(f"L_w8_{u}")
        a(f"s_waitcnt vmcnt({8*n})")
        a.label(f"L_w9_{u}")

    for i in range(o.pre):
        issue()
    a(f"v_mul_u32_u24 v5, 1536, v4")
    a(f"v_lshl_add_u32 v{V_CP}, v2, 6, v5")
    a(f"v_lshl_add_u32 v{V_CQ}, v2, 5, v5")
    wait_keep(o.pre)
    stamp(a, o, "C0", 'p')
    for d in range(4):
        T = V_T
        a(f"v_lshlrev_b32 v{T}, 16, v{V_S+d}")
        a(f"v_and_b32 v{T+1}, 0xffff0000, v{V_S+d}")
        a(f"v_lshlrev_b32 v{T+2}, 16, v{V_Z+d}")
        a(f"v_and_b32 v{T+3}, 0xffff0000, v{V_Z+d}")
        a(f"v_mul_f32 v{V_PO+4*d}, 0x4b800000, v{T}")
        a(f"v_mul_f32 v{V_PO+4*d+1}, 0x49800000, v{T}")
        a(f"v_mul_f32 v{V_PO+4*d+2}, 0x4b800000, v{T+1}")
        a(f"v_mul_f32 v{V_PO+4*d+3}, 0x49800000, v{T+1}")
        a(f"v_mul_f32_e64 v{V_QO+2*d}, -v{T+2}, v{T}")
        a(f"v_mul_f32_e64 v{V_QO+2*d+1}, -v{T+3}, v{T+1}")
        a(f"ds_write_b128 v{V_CP}, {vr(V_PO+4*d)} offset:{L_C + 16*d}")
    a(f"ds_write_b128 v{V_CQ}, {vr(V_QO)} offset:{L_C + 1024}")
    a(f"ds_write_b128 v{V_CQ}, {vr(V_QO+4)} offset:{L_C + 1024 + 16}")
    stamp(a, o, "C1", 'p')
    wait_keep(o.pre - 1)
    a("s_waitcnt lgkmcnt(0)")
    stamp(a, o, "B0a", 'p')
    a("s_barrier")
    stamp(a, o, "B0p", 'p')
    b = 0
    nxt = o.pre
    while nxt > b + 2:
        if nxt <= 3:
            issue(not o.nodma)
            nxt += 1
        wait_keep(nxt - 1 - (b + 1))
        stamp(a, o, f"B{b+1}a", 'p')
        a("s_barrier")
        b += 1
    n_it = 14 - b
    a(f"s_mov_b32 s{S_CNT}, {n_it}")
    a.label("L_hloop")
    issue(not o.nodma)
    wait_keep(1)
    a("s_barrier")
    a(f"s_sub_u32 s{S_CNT}, s{S_CNT}, 1")
    a(f"s_cmp_lg_u32 s{S_CNT}, 0")
    a("s_cbranch_scc1 L_hloop")
    a("s_waitcnt vmcnt(0)")
    a("s_barrier")
    a("s_barrier")
    stamp(a, o, "X", 'p')
    if o.stamps:
        write_stamps(a, o, 'p')
    a.label("L_end")
    a("s_endpgm")


def regs_of(tok):
    out = set()
    for m in re.finditer(r"\bv\[(\d+):(\d+)\]|\bv(\d+)\b", tok):
        if m.group(3) is not None:
            out.add(int(m.group(3)))
        else:
            out.update(range(int(m.group(1)), int(m.group(2)) + 1))
    return out


def verify_main(lines, R, o):
    txt = [l.strip() for l in lines]
    i0 = txt.index(f"L_main{R}:")
    il = txt.index(f"L_loop{R}:")
    ie = next(i for i in range(il, len(txt)) if txt[i].startswith("s_endpgm"))
    if o.U < 16:
        ib = txt.index(f"s_cbranch_scc1 L_loop{R}")
        seq = txt[i0+1:il] + txt[il+1:ib] * 3 + txt[ib+1:ie]
    else:
        seq = txt[i0+1:il] + txt[il+1:ie]
    pend = []
    lastv = {}
    lastm = {}
    for n, ins in enumerate(seq):
        op = ins.split()[0]
        if op == "s_waitcnt":
            m = re.search(r"lgkmcnt\((\d+)\)", ins)
            if m:
                k = int(m.group(1))
                while len(pend) > k:
                    pend.pop(0)
            continue
        rs = regs_of(ins)
        for p in pend:
            assert not (p & rs), f"pending LDS read hazard at {n}: {ins}"
        args = ins[len(op):].split(",")
        if op.startswith("ds_read"):
            pend.append(regs_of(args[0]))
            assert len(pend) <= 15
        elif op.startswith("v_mfma"):
            for r in regs_of(",".join(args[1:])):
                assert n - lastv.get(r, -99) > 2, f"VALU->MFMA hazard at {n}: {ins}"
            for r in regs_of(args[0]):
                lastm[r] = n
        elif op.startswith("v_") or op.startswith("buffer"):
            for r in rs:
                assert n - lastm.get(r, -99) > 8, f"MFMA->VALU hazard at {n}: {ins}"
            if op.startswith("v_"):
                for r in regs_of(args[0]):
                    lastv[r] = n


def gen(o):
    a = Asm()
    common_prologue(a, o)
    main_prologue(a, o)
    ov14 = main_variant(a, o, 14)
    a.lines.append(".p2align 6")
    ov15 = main_variant(a, o, 15)
    a.lines.append(".p2align 6")
    helper(a, o)
    if not (o.nord or o.nodq or o.Ra != 14):
        verify_main(a.lines, 14, o)
        verify_main(a.lines, 15, o)
    body = a.text()
    out = HEADER
    out += "; Override launch geometry by editing the next line (default: block=256,\n"
    out += "; grid=ceil(out_elems/256), lds=0). Harness parses it; keep it on one line.\n"
    out += f"; @launch grid=(256,1,1) block=(512,1,1) lds={LDS_BYTES}\n"
    out += f'.amdgcn_target "amdgcn-amd-amdhsa--gfx950"\n.text\n.globl {NAME}_kernel\n.p2align 8\n.type {NAME}_kernel,@function\n{NAME}_kernel:\n'
    out += body
    out += f""".section .rodata,"a"
.p2align 6
.amdhsa_kernel {NAME}_kernel
  .amdhsa_next_free_vgpr 256
  .amdhsa_next_free_sgpr 102
  .amdhsa_accum_offset 256
  .amdhsa_group_segment_fixed_size 0
  .amdhsa_kernarg_size 64
  .amdhsa_user_sgpr_count 2
  .amdhsa_user_sgpr_kernarg_segment_ptr 1
  .amdhsa_system_sgpr_workgroup_id_x 1
  .amdhsa_float_denorm_mode_32 3
  .amdhsa_float_denorm_mode_16_64 3
.end_amdhsa_kernel
"""
    return out, (ov14, ov15)


if __name__ == "__main__":
    o = Opt()
    outp = sys.argv[1]
    for kv in sys.argv[2:]:
        k, v = kv.split("=", 1)
        cur = getattr(o, k)
        if isinstance(cur, bool):
            v = v not in ("0", "False", "false")
        elif isinstance(cur, int):
            v = int(v)
        setattr(o, k, v)
    s, ov = gen(o)
    open(outp, "w").write(s)
    print("written", outp, "overflow", ov, "lines", s.count("\n"))
```

```python
import sys, re

NAME = "standalone__weight_only_int_gptq__prompt"
HEADER = open("cdna_kernels/%s.s.ref" % NAME).read().split("; Override launch")[0]

XS = 2048
QS = 14336
SS = 7168
L_W = 0
L_CT = 34816
L_X = 40960
XSLOT = 30720
LDS_BYTES = 163840


class Opt:
    P15 = 10
    P14 = 8
    LA15 = 10
    LA14 = 8
    G15 = 3
    G14 = 4
    cap = 2
    st_flags = "sc0 sc1"
    prio_m = 3
    prio_m0 = 1
    prio_h = 0
    prio_h0 = 3
    stamps = False
    rotmul = 4
    rotmask = 15
    pre = 2
    mainhi = False
    bal = False
    n0 = 4
    TG = 2
    hfirst = False
    dbg = False
    hsync = False
    tnost = False
    tnobar = False
    al15 = -1
    al14 = -1
    alt = -1
    pad15 = 0
    pad14 = 0
    padt = 0
    cst = "K,W0,B0a,B0p,rB0p,rE0,E0,E1,E2"
    pst = "K,C0,C1,B0a,B0p,B1a,B2a,B3a,X"


class Asm:
    def __init__(self):
        self.lines = []
    def __call__(self, s):
        self.lines.append("    " + s)
    def label(self, s):
        self.lines.append(s + ":")
    def align(self, n):
        self.lines.append(f".p2align {n}")
    def text(self):
        return "\n".join(self.lines) + "\n"


def vr(b, n=4):
    return f"v[{b}:{b+n-1}]"


SRD_X, SRD_Q, SRD_S, SRD_Z, SRD_O = 4, 8, 12, 16, 20
S_WAVE = 24
S_W4 = 25
S_CG, S_RP, S_RB0, S_ROT = 26, 27, 28, 29
S_T0, S_T1, S_T2, S_T3 = 30, 31, 32, 33
S_MASK0, S_MASK1 = 34, 35
S_CNT = 36
S_DX = 37
S_ROW = 38
S_IDX = 39
S_LIM = 40
S_Q0 = 44
S_XROW, S_KOFF, S_XL, S_WOFF, S_WL, S_HAS8, S_XCUR, S_XL0 = 40, 41, 42, 43, 44, 45, 46, 47
S_RET = 50
S_STAMP = 72


def stamp(a, o, name, role):
    lst = (o.cst if role == 'c' else o.pst).split(",")
    if o.stamps and name in lst:
        idx = 1 + lst.index(name)
        a(f"s_memtime s[{S_STAMP+2*idx}:{S_STAMP+2*idx+1}]")
    if o.stamps and "r" + name in lst:
        idx = 1 + lst.index("r" + name)
        a(f"s_memrealtime s[{S_STAMP+2*idx}:{S_STAMP+2*idx+1}]")


def write_stamps(a, o, role='c'):
    n = 12
    a(f"s_memrealtime s[{S_STAMP+22}:{S_STAMP+23}]")
    a("s_waitcnt lgkmcnt(0)")
    if o.dbg:
        a(f"s_cmp_lg_u32 s{S_W4}, 0")
        a("s_cbranch_scc1 L_end")
        for _ in range(8):
            a("s_sleep 127")
        a("s_mov_b32 s4, s100")
        a("s_mov_b32 s5, s101")
        a("s_mov_b32 s6, 256")
        a("s_mov_b32 s7, 0x00020000")
        a("s_mov_b64 exec, 1")
        a("v_mov_b32 v1, 0")
        def put(idx, sreg):
            a(f"v_mov_b32 v2, s{sreg}")
            a(f"buffer_atomic_umax v2, v1, s[4:7], 0 offen offset:{4*idx}")
            a("s_nop 1")
        a(f"s_and_b32 s30, s{S_STAMP+20}, 0xffffff")
        a(f"s_sub_u32 s31, 0x1000000, s30")
        put(0, 31)
        put(1, 30)
        a(f"s_and_b32 s30, s{S_STAMP+22}, 0xffffff")
        put(2, 30)
        lst = range(1, 10) if role == 'c' else range(1, 5)
        for t in lst:
            a(f"s_sub_u32 s30, s{S_STAMP+2*t}, s{S_STAMP}")
            put(2 + t if role == 'c' else 11 + t, 30)
        a("s_waitcnt vmcnt(0)")
        return
    a("s_mov_b32 s4, s100")
    a("s_mov_b32 s5, s101")
    a("s_mov_b32 s6, 0x1000000")
    a("s_mov_b32 s7, 0x00020000")
    a("s_lshl_b32 s30, s2, 3")
    if o.mainhi:
        a(f"s_xor_b32 s31, s{S_WAVE}, 4")
        a("s_add_u32 s30, s30, s31")
    else:
        a(f"s_add_u32 s30, s30, s{S_WAVE}")
    a("s_lshl_b32 s30, s30, 7")
    a("v_mov_b32 v1, 0")
    for t in range(n):
        a(f"v_mov_b32 v2, s{S_STAMP+2*t}")
        a(f"v_mov_b32 v3, s{S_STAMP+2*t+1}")
        a(f"buffer_store_dwordx2 v[2:3], v1, s[4:7], s30 offen offset:{8*t}")
        a("s_nop 1")
    a("s_waitcnt vmcnt(0)")


V_I, V_G = 72, 73


def common_prologue(a, o):
    a("s_load_dwordx2 s[4:5], s[0:1], 0")
    a("s_load_dwordx2 s[8:9], s[0:1], 8")
    a("s_load_dwordx2 s[12:13], s[0:1], 16")
    a("s_load_dwordx2 s[16:17], s[0:1], 24")
    a("s_load_dwordx2 s[20:21], s[0:1], 40")
    if o.stamps:
        a(f"s_load_dwordx2 s[100:101], s[0:1], {48 if o.dbg else 56}")
        a(f"s_memtime s[{S_STAMP}:{S_STAMP+1}]")
        a(f"s_memrealtime s[{S_STAMP+20}:{S_STAMP+21}]")
    a("v_lshrrev_b32 v1, 6, v0")
    a("v_and_b32 v0, 63, v0")
    a(f"s_and_b32 s{S_T0}, s2, 7")
    a(f"s_lshr_b32 s{S_T1}, s2, 3")
    a(f"v_readfirstlane_b32 s{S_WAVE}, v1")
    a(f"s_and_b32 s{S_T2}, s{S_T0}, 1")
    a(f"s_add_u32 s{S_T2}, s{S_T2}, 31")
    a(f"s_cmp_ge_u32 s{S_T1}, s{S_T2}")
    a("s_cbranch_scc1 L_end")
    if o.bal:
        a(f"s_mul_i32 s{S_T2}, s{S_T0}, 7")
        a(f"s_add_u32 s{S_T2}, s{S_T2}, 196")
        a(f"s_mul_i32 s{S_T0}, s{S_T0}, 49")
        a(f"s_lshr_b32 s{S_T0}, s{S_T0}, 1")
        a(f"s_sub_u32 s{S_T0}, s{S_T0}, 7")
        a(f"s_cmp_lt_u32 s{S_T1}, 7")
        a(f"s_cselect_b32 s{S_T0}, s{S_T2}, s{S_T0}")
    else:
        a(f"s_mul_i32 s{S_T0}, s{S_T0}, 63")
        a(f"s_lshr_b32 s{S_T0}, s{S_T0}, 1")
    a(f"s_add_u32 s{S_T0}, s{S_T0}, s{S_T1}")
    a(f"s_mul_i32 s{S_RP}, s{S_T0}, 2341")
    a(f"s_lshr_b32 s{S_RP}, s{S_RP}, 16")
    a(f"s_mul_i32 s{S_T1}, s{S_RP}, 28")
    a(f"s_sub_u32 s{S_CG}, s{S_T0}, s{S_T1}")
    a(f"s_mul_i32 s{S_RB0}, s{S_RP}, 14")
    a(f"s_lshr_b32 s{S_T1}, s{S_RP}, 3")
    a(f"s_add_u32 s{S_RB0}, s{S_RB0}, s{S_T1}")
    a(f"s_mul_i32 s{S_ROT}, s{S_CG}, {o.rotmul}")
    a(f"s_and_b32 s{S_ROT}, s{S_ROT}, {o.rotmask}")
    a(f"s_and_b32 s{S_W4}, s{S_WAVE}, 3")
    a(f"v_and_b32 v{V_I}, 15, v0")
    a(f"v_lshrrev_b32 v{V_G}, 4, v0")
    a(f"s_cmp_ge_u32 s{S_WAVE}, 4")
    if o.hfirst:
        a("s_cbranch_scc1 L_mainp" if o.mainhi else "s_cbranch_scc0 L_mainp")
    else:
        a("s_cbranch_scc0 L_helper" if o.mainhi else "s_cbranch_scc1 L_helper")


def srd_qsz(a):
    a(f"s_mov_b32 s10, {128*QS}")
    a("s_mov_b32 s11, 0x00020000")
    a(f"s_mov_b32 s14, {16*SS}")
    a("s_mov_b32 s15, 0x00020000")
    a(f"s_mov_b32 s18, {16*SS}")
    a("s_mov_b32 s19, 0x00020000")


V_XA = 2
V_WA, V_PA, V_QA, V_O = 4, 5, 6, 7
V_XP = 8
V_RAW = (56, 48)
V_CP = (60, 52)
V_CQ = (64, 66)
V_TMP = 68
V_CACHE = 72
V_WF = 120
V_ACC = 136
V_TA, V_TB = 48, 56
V_XL = 4


def dq_ops(raw, c1, c2, c0, d, T):
    def fm(dst, src, c, hi):
        return f"v_fma_mix_f32 v{dst}, v{src}, v{c}, v{c0} op_sel:[{hi},0,0] op_sel_hi:[1,0,0]"
    return [f"v_and_b32 v{T}, s{S_MASK0}, v{raw}",
            f"v_and_b32 v{T+1}, s{S_MASK1}, v{raw}",
            f"v_lshrrev_b32 v{raw}, 8, v{raw}",
            fm(d, T, c1, 0), fm(T+2, T+1, c2, 0), fm(d+2, T, c1, 1), fm(T+3, T+1, c2, 1),
            f"v_and_b32 v{T}, s{S_MASK0}, v{raw}",
            f"v_and_b32 v{T+1}, s{S_MASK1}, v{raw}",
            f"v_cvt_pk_bf16_f32 v{d}, v{d}, v{T+2}",
            f"v_cvt_pk_bf16_f32 v{d+2}, v{d+2}, v{T+3}",
            fm(d+1, T, c1, 0), fm(T+2, T+1, c2, 0), fm(d+3, T, c1, 1), fm(T+3, T+1, c2, 1),
            f"v_cvt_pk_bf16_f32 v{d+1}, v{d+1}, v{T+2}",
            f"v_cvt_pk_bf16_f32 v{d+3}, v{d+3}, v{T+3}"]


def dq_step(par, ks, sh=0):
    ops = []
    for b in range(2):
        ops += dq_ops(V_RAW[par] + 2*ks + b + sh, V_CP[par] + 2*b + sh, V_CP[par] + 2*b + 1 + sh, V_CQ[par] + b + sh,
                      V_WF + 8*ks + 4*b + sh, V_TMP + sh)
    return ops


def const_ops(vs, vz, T, P, Q):
    return [f"v_lshlrev_b32 v{T}, 16, v{vs}",
            f"v_and_b32 v{T+1}, 0xffff0000, v{vs}",
            f"v_lshlrev_b32 v{T+2}, 16, v{vz}",
            f"v_and_b32 v{T+3}, 0xffff0000, v{vz}",
            f"v_mul_f32 v{P}, 0x4b800000, v{T}",
            f"v_mul_f32 v{P+1}, 0x49800000, v{T}",
            f"v_mul_f32 v{P+2}, 0x4b800000, v{T+1}",
            f"v_mul_f32 v{P+3}, 0x49800000, v{T+1}",
            f"v_mul_f32_e64 v{Q}, -v{T+2}, v{T}",
            f"v_mul_f32_e64 v{Q+1}, -v{T+3}, v{T+1}"]


def acc(rb, b):
    return V_ACC + 8*rb + 4*b


def main_prologue(a, o):
    a.label("L_mainp")
    if o.prio_m0:
        a(f"s_setprio {o.prio_m0}")
    VP, VQ0, VQ1, VS, VT, VZ = 74, 75, 76, 77, 78, 80
    a(f"s_lshl_b32 s{S_T0}, s{S_W4}, 4")
    a(f"v_add_u32 v{VP}, s{S_T0}, v{V_I}")
    a(f"s_lshl_b32 s{S_T3}, s{S_CG}, 8")
    a(f"v_mul_u32_u24 v{VQ0}, {QS}, v{V_G}")
    a(f"v_lshl_add_u32 v{VS}, v{VP}, 2, s{S_T3}")
    a(f"v_lshl_add_u32 v{VQ0}, v{VS}, 1, v{VQ0}")
    a(f"v_add_u32 v{VQ1}, {4*QS}, v{VQ0}")
    srd_qsz(a)
    for j in range(4):
        a(f"s_add_u32 s{S_T0}, s{S_ROT}, {13+j}")
        a(f"s_and_b32 s{S_T0}, s{S_T0}, 15")
        a(f"s_mul_i32 s{S_Q0+4+j}, s{S_T0}, {SS}")
        a(f"s_lshl_b32 s{S_Q0+j}, s{S_Q0+4+j}, 4")
    a("s_waitcnt lgkmcnt(0)")
    stamp(a, o, "K", 'c')
    for j in range(4):
        sh = 16*(j - 3)
        a(f"buffer_load_dword v{V_CQ[1]+sh}, v{VS}, s[{SRD_S}:{SRD_S+3}], s{S_Q0+4+j} offen")
        a(f"buffer_load_dword v{V_CQ[1]+1+sh}, v{VS}, s[{SRD_Z}:{SRD_Z+3}], s{S_Q0+4+j} offen")
        a(f"buffer_load_dwordx2 {vr(V_RAW[0]+sh, 2)}, v{VQ0}, s[{SRD_Q}:{SRD_Q+3}], s{S_Q0+j} offen")
        a(f"buffer_load_dwordx2 {vr(V_RAW[0]+2+sh, 2)}, v{VQ1}, s[{SRD_Q}:{SRD_Q+3}], s{S_Q0+j} offen")
    if o.hsync:
        a("s_barrier")
    for r in range(4):
        a(f"v_mov_b32 v{VZ+r}, 0")
    a(f"s_mov_b32 s{S_MASK0}, 0x000f000f")
    a(f"s_mov_b32 s{S_MASK1}, 0x00f000f0")
    a("s_mov_b32 s22, 0")
    a("s_mov_b32 s23, 0x00020000")
    zs = [V_ACC + 16*r for r in range(7)] + [240]
    def zero():
        z = zs.pop(0)
        a(f"v_mfma_f32_32x32x16_bf16 {vr(z, 16)}, {vr(VZ)}, {vr(VZ)}, 0")
    zero()
    a(f"v_lshrrev_b32 v{VT}, 1, v{V_I}")
    a(f"v_xor_b32 v{VT}, v{VT}, v{V_G}")
    a(f"v_lshlrev_b32 v{VT}, 4, v{VT}")
    zero()
    a(f"v_lshl_add_u32 v{VT}, v{V_I}, 7, v{VT}")
    a(f"v_add_u32 v{V_XA}, {L_X + 2*XSLOT}, v{VT}")
    a(f"v_xor_b32 v{V_XA+1}, 64, v{V_XA}")
    zero()
    a(f"s_mov_b32 s{S_DX}, {-2*XSLOT}")
    a(f"v_lshlrev_b32 v{VT}, 9, v{V_G}")
    a(f"v_lshl_add_u32 v{V_WA}, v{VP}, 3, v{VT}")
    zero()
    a(f"v_lshlrev_b32 v{V_PA}, 4, v{VP}")
    a(f"v_add_u32 v{V_PA}, {L_CT - 2*1536}, v{V_PA}")
    a(f"v_lshlrev_b32 v{V_QA}, 3, v{VP}")
    zero()
    a(f"v_add_u32 v{V_QA}, {L_CT - 2*1536 + 1024}, v{V_QA}")
    a(f"v_mul_u32_u24 v{VT}, {SS}, v{V_I}")
    a(f"v_lshl_add_u32 v{VT}, v{V_G}, 4, v{VT}")
    zero()
    a(f"s_lshl_b32 s{S_T0}, s{S_W4}, 6")
    a(f"s_add_u32 s{S_T0}, s{S_T0}, s{S_T3}")
    a(f"v_add_u32 v{V_O}, s{S_T0}, v{VT}")
    zero()
    a(f"s_mul_i32 s{S_ROW}, s{S_RB0}, {16*SS}")
    a(f"s_sub_u32 s{S_ROW}, s{S_ROW}, {16*SS}")
    a(f"s_mov_b32 s{S_CNT}, 6")
    a(f"s_mov_b32 s{S_IDX}, 0")
    zero()
    a("s_waitcnt vmcnt(0)")
    stamp(a, o, "W0", 'c')
    a(f"s_set_gpr_idx_on s{S_IDX}, gpr_idx(SRC0,SRC1,SRC2,DST)")
    a.label("L_dq")
    sh = -48
    for op in const_ops(V_CQ[1] + sh, V_CQ[1] + 1 + sh, V_TMP + sh, V_CP[0] + sh, V_CQ[0] + sh):
        a(op)
    a(f"s_cmp_eq_u32 s{S_IDX}, 48")
    for op in dq_step(0, 0, sh):
        a(op)
    a("s_cbranch_scc1 L_dqe")
    a(f"s_add_u32 s{S_IDX}, s{S_IDX}, 16")
    for op in dq_step(0, 1, sh):
        a(op)
    a(f"s_set_gpr_idx_idx s{S_IDX}")
    a("s_branch L_dq")
    a.label("L_dqe")
    a("s_set_gpr_idx_off")
    if o.prio_m != o.prio_m0:
        a(f"s_setprio {o.prio_m}")
    a(f"s_mov_b32 s{S_IDX}, 0")
    stamp(a, o, "B0a", 'c')
    a(f"s_cmp_ge_u32 s{S_RP}, 7")
    a("s_cbranch_scc0 L_main14")


def main_variant(a, o, R):
    P = o.P15 if R == 15 else o.P14
    LA = o.LA15 if R == 15 else o.LA14
    G = o.G15 if R == 15 else o.G14
    U = 2
    NF = U * 2 * R
    NG = 2 * NF
    assert NF % P == 0 and (2*R) % G == 0 and LA <= P and G <= LA, (NF, P, G, LA)

    def xread(F):
        s, rem = divmod(F, 2*R)
        ks, rb = divmod(rem, R)
        return f"ds_read_b128 {vr(V_XP + 4*(F % P))}, v{V_XA + ks} offset:{(1 - s % 2)*XSLOT + rb*2048}"

    nv = [[] for _ in range(NG)]
    va = [[] for _ in range(NG)]
    for F in range(LA, LA + NF):
        g = 2*(F - LA) + 1
        if F % (2*R) == 0:
            nv[g-1].append(("s_barrier", 'b', None))
        nv[g].append((xread(F), 'r', ('x', F % NF)))
    waitgaps = {}
    for F in range(0, NF, G):
        waitgaps[(2*F - 1) % NG] = F
    for s in range(U):
        nv[2*((s + 1)*2*R - G)].append(("s_barrier", 'b', None))
    def free_gap(lo, hi):
        best = None
        for g in range(lo, hi):
            load = len(nv[g]) + len(va[g]) + (1 if g in waitgaps else 0)
            if best is None or load < best[0]:
                best = (load, g)
        return best[1]
    for s in range(U):
        b0 = s * 4 * R
        par = (s + 1) % 2
        o0 = 8 if s == 0 else 0
        g = free_gap(b0 + 2, b0 + 8)
        nv[g].append((f"ds_read2st64_b64 {vr(V_RAW[par])}, v{V_WA} offset0:{o0} offset1:{o0+4}", 'r', ('w', s)))
        if s == 0:
            g2 = free_gap(g + 1, g + 12)
            va[g2].append(f"v_xor_b32 v{V_WA}, 0x2000, v{V_WA}")
        g = free_gap(b0 + 2, b0 + 10)
        nv[g].append((f"ds_read_b128 {vr(V_CP[par])}, v{V_PA} offset:{(1-s)*1536}", 'r', ('p', s)))
        if s == U - 1:
            g2 = free_gap(g + 1, g + 16)
            va[g2].append(f"v_subrev_u32 v{V_PA}, {U*1536}, v{V_PA}")
        g = free_gap(b0 + 2, b0 + 12)
        nv[g].append((f"ds_read_b64 {vr(V_CQ[par], 2)}, v{V_QA} offset:{(1-s)*1536}", 'r', ('q', s)))
        if s == U - 1:
            g2 = free_gap(g + 1, g + 16)
            va[g2].append(f"v_subrev_u32 v{V_QA}, {U*1536}, v{V_QA}")
    glo = 2*(3*R - 1 - LA) + 2
    ghi = 2*(4*R - LA) + 1
    g = free_gap(glo, ghi)
    va[g].append(f"v_add_u32 v{V_XA}, s{S_DX}, v{V_XA}")
    glo = 2*(4*R - 1 - LA) + 2
    g = free_gap(glo, NG - 3)
    va[g].append(f"v_add_u32 v{V_XA+1}, s{S_DX}, v{V_XA+1}")
    g = free_gap(g + 1, NG - 2)
    nv[g].append((f"s_sub_u32 s{S_DX}, 0, s{S_DX}", 's', None))
    g = free_gap(g + 1, NG - 1)
    nv[g].append((f"s_sub_u32 s{S_CNT}, s{S_CNT}, 1", 's', None))
    over = 0
    for s in range(U):
        for ks in range(2):
            b0 = s*4*R + ks*2*R
            ops = dq_step(s % 2, 1) if ks == 0 else dq_step((s + 1) % 2, 0)
            gaps = list(range(b0, b0 + 2*R))
            def load(g):
                return len(nv[g]) + len(va[g]) + (1 if g in waitgaps else 0) + (1 if g == NG - 1 else 0)
            room = {g: max(0, min(2 - len(va[g]), o.cap - load(g))) for g in gaps}
            tot = sum(room.values())
            extra = len(ops) - tot
            if extra > 0:
                over += extra
                while extra > 0:
                    key = lambda g: (room[g] + load(g), room[g] + len(va[g]))
                    mn = min(key(g) for g in gaps)
                    cand = [g for g in gaps if key(g) == mn]
                    k = min(extra, len(cand))
                    step = len(cand) / k
                    for t in range(k):
                        room[cand[int((t + 0.5) * step)]] += 1
                    extra -= k
            else:
                surplus = -extra
                while surplus > 0:
                    mx = max(room[g] + load(g) for g in gaps if room[g] > 0)
                    cand = [g for g in gaps if room[g] > 0 and room[g] + load(g) == mx]
                    k = min(surplus, len(cand))
                    step = len(cand) / k
                    for t in range(k):
                        room[cand[len(cand) - 1 - int(t * step)]] -= 1
                    surplus -= k
            it = iter(ops)
            for g in gaps:
                for _ in range(room[g]):
                    va[g].append(next(it))
    order = []
    for g in range(NG):
        for t, kind, key in nv[g]:
            if kind == 'r':
                order.append((g, key))
    def wait_count(g, F):
        need = ('x', (F + G - 1) % NF)
        idx = max((t for t, (gg, k) in enumerate(order) if gg <= g), default=-1)
        cnt = 0
        while order[idx % len(order)][1] != need:
            idx -= 1
            cnt += 1
        assert cnt <= 15
        return cnt

    a.label(f"L_main{R}")
    a(f"s_mov_b32 s{S_LIM}, {8*R}")
    a(f"s_mov_b32 s{S_CNT}, 5")
    a("s_barrier")
    stamp(a, o, "B0p", 'c')
    for F in range(LA):
        a(xread(F))
    a(f"s_waitcnt lgkmcnt({LA - G})")
    al, pad = (o.al15, o.pad15) if R == 15 else (o.al14, o.pad14)
    if al >= 0:
        a.lines.append(f".p2alignl {al}, 0xbf800000")
    for _ in range(pad):
        a("s_nop 0")
    a.label(f"L_loop{R}")
    for n in range(NG):
        F = n // 2
        s, rem = divmod(F, 2*R)
        ks, rb = divmod(rem, R)
        b = n % 2
        a(f"v_mfma_f32_16x16x32_bf16 {vr(acc(rb, b))}, {vr(V_WF + 8*ks + 4*b)}, {vr(V_XP + 4*(F % P))}, {vr(acc(rb, b))}")
        for t, kind, key in nv[n]:
            a(t)
        for t in va[n]:
            a(t)
        if n in waitgaps:
            a(f"s_waitcnt lgkmcnt({wait_count(n, waitgaps[n])})")
    a(f"s_cbranch_scc0 L_loop{R}")
    return over


def tail(a, o):
    a.label("L_tail")
    stamp(a, o, "T0", 'c')
    dlo = -2*XSLOT - o.n0*2048
    a(f"v_add_u32 v{V_XL}, {dlo}, v{V_XA}")
    a(f"v_add_u32 v{V_XL+1}, {dlo}, v{V_XA+1}")
    def rd(j, nxt):
        st, ks = divmod(j, 2)
        reg = (V_XA if st < 2 else V_XL) + ks
        off = [XSLOT, 0, XSLOT + o.n0*2048, 0][st] + 2048*nxt
        return f"ds_read_b128 {vr(V_XP + 4*j)}, v{reg} offset:{off}"
    for j in range(1, 7):
        a(rd(j, 0))
    for op in dq_step(0, 1):
        a(op)
    a("s_waitcnt lgkmcnt(0)")
    a(f"s_set_gpr_idx_on s{S_IDX}, gpr_idx(SRC2)")
    gaps = [[] for _ in range(16)]
    gaps[0] = [rd(7, 0), "s_barrier"]
    gaps[1] = ["s_set_gpr_idx_off"]
    for j in range(7):
        gaps[2*j+1].append(rd(j, 1))
    gaps[2] += [f"v_add_u32 v{V_XL+1}, 2048, v{V_XL+1}", f"s_add_u32 s{S_IDX}, s{S_IDX}, 8"]
    cv = [f"v_cvt_pk_bf16_f32 v{V_TB+r}, v{V_TB+r}, v{V_TB+4+r}" for r in range(4)]
    st = f"buffer_store_dwordx4 {vr(V_TB)}, v{V_O}, s[{SRD_O}:{SRD_O+3}], s{S_ROW} offen {o.st_flags}".rstrip()
    gaps[4] += cv[0:2]
    gaps[5] += [cv[2]]
    gaps[6] += [cv[3], f"v_add_u32 v{V_XA}, 2048, v{V_XA}"]
    gaps[8] += [st, f"v_add_u32 v{V_XA+1}, 2048, v{V_XA+1}"]
    gaps[9] += [f"s_add_u32 s{S_ROW}, s{S_ROW}, {16*SS}"]
    gaps[10] += [f"s_mov_b32 s22, {2048*SS}"]
    gaps[12] += [f"s_cmp_lg_u32 s{S_IDX}, s{S_LIM}"]
    gaps[14] += [f"v_add_u32 v{V_XL}, 2048, v{V_XL}"]
    gaps[15] += [f"s_set_gpr_idx_on s{S_IDX}, gpr_idx(SRC2)", "s_cbranch_scc1 L_tloop"]
    gaps[11] = [rd(5, 0)]
    order = [(0, 7)] + [(2*j+1, j) for j in range(7)]
    for j0 in range(0, 8, o.TG):
        g = 14 if j0 == 0 else 2*j0 - 1
        need = j0 + o.TG - 1
        idx = max(t for t, (gg, k) in enumerate(order) if gg <= g)
        cnt = 0
        while order[idx % 8][1] != need:
            idx -= 1
            cnt += 1
        gaps[g].append(f"s_waitcnt lgkmcnt({cnt})")
    if o.alt >= 0:
        a.lines.append(f".p2alignl {o.alt}, 0xbf800000")
    for _ in range(o.padt):
        a("s_nop 0")
    a.label("L_tloop")
    for n in range(16):
        j, b = divmod(n, 2)
        w = V_WF + 8*j + 4*b if j < 2 else V_CACHE + 8*(j - 2) + 4*b
        d = V_TB + 4*b if j == 7 else V_TA + 4*b
        c = V_ACC + 4*b if j == 0 else V_TA + 4*b
        a(f"v_mfma_f32_16x16x32_bf16 {vr(d)}, {vr(w)}, {vr(V_XP + 4*j)}, {vr(c)}")
        for t in gaps[n]:
            if (o.tnost and t == st) or (o.tnobar and t == "s_barrier"):
                continue
            a(t)
    a("s_set_gpr_idx_off")
    stamp(a, o, "E0", 'c')
    a("s_nop 7")
    for t in cv:
        a(t)
    a(st)
    if o.stamps:
        stamp(a, o, "E1", 'c')
        a("s_waitcnt vmcnt(0)")
        stamp(a, o, "E2", 'c')
        write_stamps(a, o)
    a("s_endpgm")


def helper(a, o):
    V_XO, V_WO, V_CO, V_CPA, V_CQA = 10, 11, 12, 15, 16
    V_S, V_Z = 20, 24
    V_T = 28
    V_PO = 32
    V_QO = 48
    a.label("L_helper")
    if o.prio_h0:
        a(f"s_setprio {o.prio_h0}")
    a(f"s_and_b32 s{S_T0}, s{S_W4}, 1")
    a(f"s_lshl_b32 s{S_T0}, s{S_T0}, 2")
    a("v_and_b32 v5, 7, v0")
    a(f"v_xor_b32 v5, v5, v{V_G}")
    a(f"v_xor_b32 v5, s{S_T0}, v5")
    a("v_lshlrev_b32 v5, 4, v5")
    a("v_lshrrev_b32 v6, 3, v0")
    a(f"v_lshl_add_u32 v{V_XO}, v6, 11, v5")
    a("s_mov_b32 s6, 0x400000")
    a("s_mov_b32 s7, 0x00020000")
    a(f"s_lshl_b32 s{S_XROW}, s{S_RB0}, 15")
    a(f"s_lshl_b32 s{S_T0}, s{S_W4}, 14")
    a(f"s_add_u32 s{S_XROW}, s{S_XROW}, s{S_T0}")
    a(f"s_lshl_b32 s{S_KOFF}, s{S_ROT}, 7")
    a(f"s_lshl_b32 s{S_T0}, s{S_W4}, 10")
    a(f"s_add_u32 s{S_XL0}, s{S_T0}, {L_X + 3*XSLOT}")
    a(f"s_mov_b32 s{S_XL}, s{S_XL0}")
    a("v_lshrrev_b32 v5, 5, v0")
    a(f"v_mul_u32_u24 v5, {QS}, v5")
    a("v_and_b32 v6, 31, v0")
    a(f"v_lshl_add_u32 v5, v6, 4, v5")
    a(f"s_mul_i32 s{S_T1}, s{S_W4}, {2*QS}")
    a(f"s_lshl_b32 s{S_T2}, s{S_CG}, 9")
    a(f"s_add_u32 s{S_T1}, s{S_T1}, s{S_T2}")
    a(f"v_add_u32 v{V_WO}, s{S_T1}, v5")
    a(f"s_add_u32 s{S_WOFF}, s{S_ROT}, 1")
    a(f"s_and_b32 s{S_WOFF}, s{S_WOFF}, 15")
    a(f"s_mul_i32 s{S_WOFF}, s{S_WOFF}, {8*QS}")
    a(f"s_add_u32 s{S_WL}, s{S_T0}, {L_W + 4096}")
    srd_qsz(a)
    a(f"s_cmp_ge_u32 s{S_RP}, 7")
    a(f"s_cselect_b32 s{S_HAS8}, 2, 0")
    a(f"s_cmp_lt_u32 s{S_W4}, s{S_HAS8}")
    a(f"s_cselect_b32 s{S_HAS8}, 1, 0")
    a("s_waitcnt lgkmcnt(0)")
    stamp(a, o, "K", 'p')
    call = f"s_call_b64 s[{S_RET}:{S_RET+1}], L_issue"
    if o.hsync:
        a("s_barrier")
    a(call)
    a(f"s_lshl_b32 s{S_T0}, s{S_W4}, 4")
    a(f"v_add_u32 v4, s{S_T0}, v{V_I}")
    a(f"s_lshl_b32 s{S_T3}, s{S_CG}, 8")
    a(f"s_add_u32 s{S_T0}, s{S_ROT}, 1")
    a(f"v_add_u32 v5, s{S_T0}, v{V_G}")
    for p in range(3):
        a("v_and_b32 v6, 15, v5")
        a(f"v_mul_u32_u24 v6, {SS}, v6")
        a(f"v_lshl_add_u32 v{V_CO+p}, v4, 2, v6")
        if p < 2:
            a("v_add_u32 v5, 4, v5")
        a(f"buffer_load_dword v{V_S+p}, v{V_CO+p}, s[{SRD_S}:{SRD_S+3}], s{S_T3} offen")
        a(f"buffer_load_dword v{V_Z+p}, v{V_CO+p}, s[{SRD_Z}:{SRD_Z+3}], s{S_T3} offen")
    for i in range(1, o.pre):
        a(call)
    a(f"v_mul_u32_u24 v5, 1536, v{V_G}")
    a(f"v_sub_u32 v5, {L_CT - 1536 - 2*6144}, v5")
    a(f"v_lshl_add_u32 v{V_CPA}, v4, 4, v5")
    a(f"v_lshl_add_u32 v{V_CQA}, v4, 3, v5")
    a(f"s_waitcnt vmcnt({8*(o.pre-1)})")
    stamp(a, o, "C0", 'p')
    for p in range(3):
        for op in const_ops(V_S + p, V_Z + p, V_T, V_PO + 4*p, V_QO + 2*p):
            a(op)
        a(f"ds_write_b128 v{V_CPA}, {vr(V_PO+4*p)} offset:{(2-p)*6144}")
        a(f"ds_write_b64 v{V_CQA}, {vr(V_QO+2*p, 2)} offset:{(2-p)*6144 + 1024}")
    stamp(a, o, "C1", 'p')
    a("s_waitcnt lgkmcnt(0)")
    stamp(a, o, "B0a", 'p')
    a("s_barrier")
    stamp(a, o, "B0p", 'p')
    if o.prio_h != o.prio_h0:
        a(f"s_setprio {o.prio_h}")
    for i in range(o.pre, 4):
        a(call)
    a(f"s_mov_b32 s{S_CNT}, 10")
    a.label("L_hloop")
    a("s_waitcnt vmcnt(16)")
    a("s_barrier")
    a("s_barrier")
    a(call)
    a(f"s_sub_u32 s{S_CNT}, s{S_CNT}, 1")
    a(f"s_cmp_lg_u32 s{S_CNT}, 0")
    a("s_cbranch_scc1 L_hloop")
    ne = o.n0 // 2
    S_X15, S_L15 = S_T0, S_T1
    a(f"s_add_u32 s{S_X15}, s{S_KOFF}, 128")
    a(f"s_and_b32 s{S_X15}, s{S_X15}, 2047")
    a(f"s_add_u32 s{S_X15}, s{S_X15}, s{S_XROW}")
    a(f"s_sub_u32 s{S_L15}, s{S_XL0}, {3*XSLOT + o.n0*2048}")
    a(f"s_mov_b32 m0, s{S_L15}")
    dma15 = f"buffer_load_dwordx4 v{V_XO}, s[{SRD_X}:{SRD_X+3}], s{S_X15} offen lds"
    for t in range(ne):
        a(f"s_add_u32 s{S_L15}, s{S_L15}, 4096")
        a(dma15)
        a(f"s_mov_b32 m0, s{S_L15}")
        a(f"s_add_u32 s{S_X15}, s{S_X15}, 65536")
    a(f"s_waitcnt vmcnt({16 + ne})")
    a("s_barrier")
    a("s_barrier")
    a(call)
    a(f"s_waitcnt vmcnt({16 + ne})")
    a("s_barrier")
    a("s_waitcnt vmcnt(7)")
    a("s_barrier")
    a(f"s_cmp_eq_u32 s{S_HAS8}, 0")
    a("s_cbranch_scc1 L_h15")
    a(f"s_add_u32 m0, s{S_L15}, {(7-ne)*4096}")
    a(f"s_add_u32 s{S_T2}, s{S_X15}, {(7-ne)*65536}")
    a(f"buffer_load_dwordx4 v{V_XO}, s[{SRD_X}:{SRD_X+3}], s{S_T2} offen lds")
    a.label("L_h15")
    a(f"s_mov_b32 m0, s{S_L15}")
    a("s_nop 0")
    for t in range(ne, 7):
        a(dma15)
        if t < 6:
            a("s_add_u32 m0, m0, 4096")
            a(f"s_add_u32 s{S_X15}, s{S_X15}, 65536")
    n15 = 7 - ne
    for i in range(0 if o.tnobar else 12):
        t = (i + 1) // 2
        if i % 2 == 1:
            a(f"s_waitcnt vmcnt({n15 + 7 - t if t < ne else 6 - t})")
        a("s_barrier")
    stamp(a, o, "X", 'p')
    if o.tnobar:
        a("s_waitcnt vmcnt(0)")
    if o.stamps and not o.tnobar:
        a("s_barrier")
        a("s_barrier")
        a(f"s_cmp_ge_u32 s{S_RP}, 7")
        a("s_cbranch_scc0 L_hst")
        a("s_barrier")
        a.label("L_hst")
    if o.stamps:
        write_stamps(a, o, 'p')
    a.label("L_end")
    a("s_endpgm")
    a.label("L_issue")
    a(f"s_add_u32 s{S_XCUR}, s{S_XROW}, s{S_KOFF}")
    a(f"s_cmp_eq_u32 s{S_HAS8}, 0")
    a("s_cbranch_scc1 L_i7")
    a(f"s_add_u32 m0, s{S_XL}, {7*4096}")
    a(f"s_add_u32 s{S_T2}, s{S_XCUR}, {7*65536}")
    a(f"buffer_load_dwordx4 v{V_XO}, s[{SRD_X}:{SRD_X+3}], s{S_T2} offen lds")
    a.label("L_i7")
    a(f"s_mov_b32 m0, s{S_XL}")
    a(f"s_add_u32 s{S_KOFF}, s{S_KOFF}, 128")
    for t in range(7):
        a(f"buffer_load_dwordx4 v{V_XO}, s[{SRD_X}:{SRD_X+3}], s{S_XCUR} offen lds")
        if t < 6:
            a("s_add_u32 m0, m0, 4096")
            a(f"s_add_u32 s{S_XCUR}, s{S_XCUR}, 65536")
    a(f"s_mov_b32 m0, s{S_WL}")
    a(f"s_and_b32 s{S_KOFF}, s{S_KOFF}, 2047")
    a(f"buffer_load_dwordx4 v{V_WO}, s[{SRD_Q}:{SRD_Q+3}], s{S_WOFF} offen lds")
    a(f"s_add_u32 s{S_WOFF}, s{S_WOFF}, {8*QS}")
    a(f"s_cmp_eq_u32 s{S_WOFF}, {128*QS}")
    a(f"s_cselect_b32 s{S_WOFF}, 0, s{S_WOFF}")
    a(f"s_add_u32 s{S_WL}, s{S_WL}, 4096")
    a(f"s_and_b32 s{S_WL}, s{S_WL}, 16383")
    a(f"s_sub_u32 s{S_XL}, s{S_XL}, {XSLOT}")
    a(f"s_cmp_lt_u32 s{S_XL}, {L_X}")
    a(f"s_cselect_b32 s{S_XL}, s{S_XL0}, s{S_XL}")
    a(f"s_setpc_b64 s[{S_RET}:{S_RET+1}]")


def regs_of(tok):
    out = set()
    for m in re.finditer(r"\bv\[(\d+):(\d+)\]|\bv(\d+)\b", tok):
        if m.group(3) is not None:
            out.add(int(m.group(3)))
        else:
            out.update(range(int(m.group(1)), int(m.group(2)) + 1))
    return out


def verify_main(lines, R, o):
    txt = [l.strip() for l in lines]
    i0 = txt.index(f"L_main{R}:")
    il = txt.index(f"L_loop{R}:")
    ib = txt.index(f"s_cbranch_scc0 L_loop{R}")
    it = txt.index("L_tail:")
    itl = txt.index("L_tloop:")
    itb = txt.index("s_cbranch_scc1 L_tloop")
    ie = next(i for i in range(itb, len(txt)) if txt[i].startswith("s_endpgm"))
    seq = txt[i0+1:il] + txt[il+1:ib+1] * 3 + txt[it+1:itl] + txt[itl+1:itb+1] * 3 + txt[itb+1:ie]
    pend = []
    lastv = {}
    lastm = {}
    n = 0
    for ins in seq:
        op = ins.split()[0]
        if op.startswith("."):
            continue
        n += 1
        if op == "s_nop":
            n += int(ins.split()[1])
        if op == "s_waitcnt":
            m = re.search(r"lgkmcnt\((\d+)\)", ins)
            if m:
                k = int(m.group(1))
                while len(pend) > k:
                    pend.pop(0)
            continue
        rs = regs_of(ins)
        args = ins[len(op):].split(",")
        if op.startswith("ds_read"):
            rs = regs_of(args[1])
        for p in pend:
            assert not (p & rs), f"pending LDS read hazard at {n}: {ins}"
        if op.startswith("ds_read"):
            pend.append(regs_of(args[0]))
            assert len(pend) <= 15, f"too many reads at {n}"
        elif op.startswith("v_mfma"):
            for r in regs_of(",".join(args[1:])):
                assert n - lastv.get(r, -99) > 2, f"VALU->MFMA hazard at {n}: {ins}"
            for r in regs_of(args[0]):
                lastm[r] = n
        elif op.startswith("v_") or op.startswith("buffer"):
            for r in rs:
                assert n - lastm.get(r, -99) > 8, f"MFMA->VALU hazard at {n}: {ins}"
            if op.startswith("v_"):
                for r in regs_of(args[0]):
                    lastv[r] = n


def gen(o):
    a = Asm()
    common_prologue(a, o)
    if o.hfirst:
        helper(a, o)
        a.align(6)
    main_prologue(a, o)
    ov15 = main_variant(a, o, 15)
    tail(a, o)
    a.align(6)
    ov14 = main_variant(a, o, 14)
    a("s_branch L_tail")
    if not o.hfirst:
        a.align(6)
        helper(a, o)
    verify_main(a.lines, 14, o)
    verify_main(a.lines, 15, o)
    body = a.text()
    out = HEADER
    out += "; Override launch geometry by editing the next line (default: block=256,\n"
    out += "; grid=ceil(out_elems/256), lds=0). Harness parses it; keep it on one line.\n"
    out += f"; @launch grid=(256,1,1) block=(512,1,1) lds={LDS_BYTES}\n"
    out += f'.amdgcn_target "amdgcn-amd-amdhsa--gfx950"\n.text\n.globl {NAME}_kernel\n.p2align 8\n.type {NAME}_kernel,@function\n{NAME}_kernel:\n'
    out += body
    out += f"""    s_endpgm
.section .rodata,"a"
.p2align 6
.amdhsa_kernel {NAME}_kernel
  .amdhsa_next_free_vgpr 256
  .amdhsa_next_free_sgpr 102
  .amdhsa_accum_offset 256
  .amdhsa_group_segment_fixed_size 0
  .amdhsa_kernarg_size 64
  .amdhsa_user_sgpr_count 2
  .amdhsa_user_sgpr_kernarg_segment_ptr 1
  .amdhsa_system_sgpr_workgroup_id_x 1
  .amdhsa_float_denorm_mode_32 3
  .amdhsa_float_denorm_mode_16_64 3
.end_amdhsa_kernel
"""
    return out, (ov14, ov15)


if __name__ == "__main__":
    o = Opt()
    outp = sys.argv[1]
    for kv in sys.argv[2:]:
        k, v = kv.split("=", 1)
        cur = getattr(o, k)
        if isinstance(cur, bool):
            v = v not in ("0", "False", "false")
        elif isinstance(cur, int):
            v = int(v)
        setattr(o, k, v)
    s, ov = gen(o)
    open(outp, "w").write(s)
    print("written", outp, "overflow", ov, "lines", s.count("\n"))
```
